```python
import torch

def _softmax(x, axis=-1):
    return torch.softmax(x, dim=axis)
def _gelu(x):
    return torch.nn.functional.gelu(x, approximate="tanh")
def _silu(x):
    return torch.nn.functional.silu(x)
def _sigmoid(x):
    return torch.sigmoid(x)
def _layernorm(x, axis=-1, eps=1e-5):
    m = x.mean(dim=axis, keepdim=True)
    v = x.var(dim=axis, keepdim=True, unbiased=False)
    return (x - m) / torch.sqrt(v + eps)
def _scatter_add(tgt, idx, src, axis=0):
    return tgt.clone().index_add_(axis, idx, src)
def _segment_sum(src, seg, n):
    out = torch.zeros((n,) + src.shape[1:], dtype=src.dtype)
    return out.index_add_(0, seg, src)
def _pad(x, pw):
    flat = tuple(v for pair in reversed(pw) for v in pair)
    return torch.nn.functional.pad(x, flat)

kernel_name = 'interleave_layers__sliding_local_dilated__glu_gated_reglu__prompt'

def setup_inputs():

    _w = (lambda a: (lambda t: t.to(torch.bfloat16) if t.is_floating_point() else t)(torch.as_tensor(a)))
    def _A_setup():
        B, S, D = 1, 2048, 512
        return {
            "x": _w((lambda *s: torch.randn(*s, dtype=torch.bfloat16) * 0.05)(B, S, D)),
            "wqkv": _w((lambda *s: torch.randn(*s, dtype=torch.bfloat16) * 0.05)(D, 3 * D)),
            "wo": _w((lambda *s: torch.randn(*s, dtype=torch.bfloat16) * 0.05)(D, D)),
        }
    _A_in = _A_setup()

    def _B_setup():
        B, S, D, F = 1, 2048, 512, 1792
        return {
            "x": _w((lambda *s: torch.randn(*s, dtype=torch.bfloat16) * 0.05)(B, S, D)),
            "W_gate": _w((lambda *s: torch.randn(*s, dtype=torch.bfloat16) * 0.8)(D, F) * (2.0 / D) ** 0.5),
            "W_up": _w((lambda *s: torch.randn(*s, dtype=torch.bfloat16) * 0.8)(D, F) * (2.0 / D) ** 0.5),
            "W_down": _w((lambda *s: torch.randn(*s, dtype=torch.bfloat16) * 0.8)(F, D) * (1.0 / F) ** 0.5),
        }
    _B_in = _B_setup()

    return {
        "A_x": _A_in["x"],
        "A_wqkv": _A_in["wqkv"],
        "A_wo": _A_in["wo"],
        "B_x": _B_in["x"],
        "B_W_gate": _B_in["W_gate"],
        "B_W_up": _B_in["W_up"],
        "B_W_down": _B_in["W_down"],
    }

def reference(A_x, A_wqkv, A_wo, B_x, B_W_gate, B_W_up, B_W_down):
    def _A_ref(x, wqkv, wo):
        B, S, D = x.shape
        H = 32; Dh = D // H
        W, dil = 8, 2
        qkv = (lambda x, *d: x.permute(*d))((x @ wqkv).reshape(B, S, 3, H, Dh), 2, 0, 3, 1, 4)
        q, k, v = qkv[0], qkv[1], qkv[2]
        scale = Dh ** -0.5
        pos = torch.arange(S)
        off = torch.arange(W) * dil
        idx = pos[:, None] - off[None, :]
        mask = idx >= 0
        idx_c = torch.where(mask, idx, 0).reshape(-1)
        kg = k[:, :, idx_c, :].reshape(B, H, S, W, Dh)
        vg = v[:, :, idx_c, :].reshape(B, H, S, W, Dh)
        logits = torch.einsum("bhsd,bhswd->bhsw", q, kg) * scale
        logits = torch.where(mask[None, None, :, :], logits, -1e9)
        attn = _softmax(logits, axis=-1)
        o = torch.einsum("bhsw,bhswd->bhsd", attn, vg)
        return (lambda x, *d: x.permute(*d))(o, 0, 2, 1, 3).reshape(B, S, D) @ wo

    def _B_ref(x, W_gate, W_up, W_down):
        gate = torch.einsum("bsd,df->bsf", x, W_gate)
        up = torch.einsum("bsd,df->bsf", x, W_up)
        gate = gate * (lambda x, dt: x.to(dt))(gate > 0, gate.dtype)
        h = gate * up
        return torch.einsum("bsf,fd->bsd", h, W_down)

    x = A_x
    x = x + _A_ref(_layernorm(x, axis=-1), A_wqkv, A_wo)
    x = x + _B_ref(_layernorm(x, axis=-1), B_W_gate, B_W_up, B_W_down)
    x = x + _A_ref(_layernorm(x, axis=-1), A_wqkv, A_wo)
    x = x + _B_ref(_layernorm(x, axis=-1), B_W_gate, B_W_up, B_W_down)
    return x
```

```python
import re

TRANS = ("v_exp_f32", "v_log_f32", "v_rcp_f32", "v_rsq_f32", "v_sqrt_f32")
REG_RE = re.compile(r"^(-|\|)?([vas])(\d+)\|?$|^(-|\|)?([vas])\[(\d+):(\d+)\]\|?$")


def regs_of(tok):
    tok = tok.strip()
    if tok in ("vcc", "m0", "exec", "scc"):
        return {tok}
    m = REG_RE.match(tok)
    if not m:
        return set()
    if m.group(2):
        return {m.group(2) + m.group(3)}
    return {m.group(5) + str(i) for i in range(int(m.group(6)), int(m.group(7)) + 1)}


class I:
    def __init__(self, text, tag=None):
        self.text = text.strip()
        self.tag = tag
        self.pad = 0
        self.wait = None
        self.parse()

    def parse(self):
        t = self.text
        self.label = t.endswith(":")
        self.directive = t.startswith(".") or t.startswith(";")
        self.defs, self.uses = set(), set()
        self.kind = "other"
        self.mn = ""
        if self.label or self.directive or not t:
            return
        parts = t.split(None, 1)
        mn = self.mn = parts[0]
        ops, mods = [], ""
        if len(parts) > 1:
            raw = re.split(r",(?![^\[]*\])", parts[1])
            for i, o in enumerate(raw):
                o = o.strip()
                w = o.split(None, 1)
                ops.append(w[0] if w else "")
                if len(w) > 1:
                    mods += " " + w[1]
        self.ops, self.mods = ops, mods
        R = [regs_of(o) for o in ops]
        allr = set().union(*R) if R else set()
        rest = set().union(*R[1:]) if len(R) > 1 else set()
        if mn.startswith("v_mfma"):
            self.kind = "mfma"
            self.defs = R[0]
            self.ab = R[1] | R[2]
            self.c = R[3]
            self.uses = self.ab | self.c
            self.passes = 8 if "32x32" in mn else 4
        elif mn.startswith("v_"):
            self.kind = "valu"
            if mn.startswith("v_permlane"):
                self.defs, self.uses = allr, allr
            elif mn.startswith(("v_fmac", "v_dot2c")):
                self.defs, self.uses = R[0], allr
            elif mn in ("v_nop",):
                pass
            else:
                self.defs, self.uses = R[0], rest
            if "_dpp" in mn:
                self.uses = self.uses | R[0]
        elif mn.startswith("ds_"):
            self.kind = "ds"
            if mn.startswith("ds_read"):
                self.defs, self.uses = R[0], rest
            else:
                self.uses = allr
        elif mn.startswith(("buffer_", "global_")):
            self.kind = "vmem"
            if " lds" in mods or "_lds_" in mn:
                self.uses = allr | {"m0"}
                self.dma = True
            elif "load" in mn:
                self.defs, self.uses = R[0], rest
            else:
                self.uses = allr
        elif mn.startswith("s_"):
            self.kind = "salu"
            if mn.startswith(("s_load", "s_memtime", "s_memrealtime")):
                self.kind = "smem"
                self.defs, self.uses = R[0], rest
            elif mn.startswith(("s_cmp", "s_waitcnt", "s_barrier", "s_branch", "s_cbranch", "s_nop", "s_sleep",
                                "s_endpgm", "s_setprio", "s_bitcmp")):
                self.uses = allr
            else:
                self.defs, self.uses = R[0], rest

    def states(self):
        if self.label or self.directive:
            return 0
        if self.wait is not None and self.text == "":
            return 0
        if self.mn == "s_nop":
            return int(self.ops[0]) + 1
        return 1

    def cost(self):
        return 2 if self.mn in TRANS or self.kind == "mfma" else 1


def W(vm=None, lgkm=None, local=(), prior=()):
    i = I("")
    i.local, i.prior = tuple(local), tuple(prior)
    norm = lambda l: [(x, 0) if isinstance(x, str) else x for x in (l or [])]
    i.wait = dict(vm=norm(vm), lgkm=norm(lgkm))
    i.kind = "salu"
    i.mn = "s_waitcnt"
    return i


def mk(x):
    if isinstance(x, I):
        return x
    if isinstance(x, tuple):
        return I(x[0], x[1])
    return I(x)


class Seg:
    def __init__(self, name):
        self.name = name
        self.ins = []

    def __call__(self, *xs):
        for x in xs:
            if isinstance(x, list):
                self(*x)
            elif isinstance(x, str) and "\n" in x:
                for l in x.split("\n"):
                    if l.strip():
                        self.ins.append(I(l))
            else:
                self.ins.append(mk(x))
        return self


def weave(backbone, fixed, streams, cap=2, name=""):
    n = len(backbone)
    out = []
    pos = [0] * len(streams)
    last = [-100] * len(streams)
    placed = {}
    for x in fixed.get(0, []):
        out.append(mk(x))
    for k in range(n):
        out.append(mk(backbone[k]))
        fx = [mk(x) for x in fixed.get(k + 1, [])]
        budget = cap - sum(x.cost() for x in fx if not x.label)
        progress = True
        while budget > 0 and progress:
            progress = False
            for si, st in enumerate(streams):
                while pos[si] < len(st):
                    it = st[pos[si]]
                    ins = mk(it[1])
                    gapmin = it[2] if len(it) > 2 else 0
                    if ins.label:
                        out.append(ins)
                        pos[si] += 1
                        continue
                    if it[0] > k or last[si] + gapmin > k or budget <= 0:
                        break
                    if ins.cost() > budget and budget < cap:
                        break
                    out.append(ins)
                    placed[(si, pos[si])] = k
                    budget -= ins.cost()
                    last[si] = k
                    pos[si] += 1
                    progress = True
        out.extend(fx)
    over = 0
    for si, st in enumerate(streams):
        while pos[si] < len(st):
            out.append(mk(st[pos[si]][1]))
            over += 1
            pos[si] += 1
    ends = [max([g for (s, _), g in placed.items() if s == si], default=-1) for si in range(len(streams))]
    weave.log.append(f"{name}: {n} mfma, stream ends {ends}, overflow {over}")
    return out


weave.log = []


def check_order(seg):
    for n, ins in enumerate(seg.ins):
        if ins.wait is None:
            continue
        before = [x.tag for x in seg.ins[:n]]
        after = [x.tag for x in seg.ins[n:]]
        for t in ins.local:
            assert t in before and t not in after, f"{seg.name}: wait on local tag {t} is misplaced"
        for t in ins.prior:
            assert t not in before, f"{seg.name}: wait on prior tag {t} comes after a new op"


def resolve_waits(trace):
    best = {}
    ops = {"vm": [], "lgkm": []}
    done = {"vm": 0, "lgkm": 0}
    for seg in trace:
        for ins in seg.ins:
            if ins.wait is not None:
                b = best.setdefault(id(ins), {"ins": ins, "vm": None, "lgkm": None})
                for cls in ("vm", "lgkm"):
                    for tag, age in ins.wait[cls]:
                        idx = [i for i, t in enumerate(ops[cls]) if t == tag]
                        if len(idx) <= age:
                            continue
                        p = idx[-1 - age]
                        if p < done[cls]:
                            continue
                        cnt = len(ops[cls]) - 1 - p
                        b[cls] = cnt if b[cls] is None else min(b[cls], cnt)
                continue
            if ins.kind == "vmem":
                ops["vm"].append(ins.tag)
            elif ins.kind == "ds":
                ops["lgkm"].append(ins.tag)
            elif ins.kind == "smem":
                ops["lgkm"].append("SMEM")
            elif ins.mn == "s_waitcnt":
                for cls, pat in (("vm", r"vmcnt\((\d+)\)"), ("lgkm", r"lgkmcnt\((\d+)\)")):
                    m = re.search(pat, ins.text)
                    if m:
                        done[cls] = max(done[cls], len(ops[cls]) - int(m.group(1)))
    for b in best.values():
        ins = b["ins"]
        prev = getattr(ins, "resolved", {"vm": None, "lgkm": None})
        for cls in ("vm", "lgkm"):
            if prev[cls] is not None:
                b[cls] = prev[cls] if b[cls] is None else min(b[cls], prev[cls])
        ins.resolved = {"vm": b["vm"], "lgkm": b["lgkm"]}
        parts = []
        if b["vm"] is not None:
            parts.append(f"vmcnt({min(b['vm'], 63)})")
        if b["lgkm"] is not None:
            parts.append(f"lgkmcnt({min(b['lgkm'], 15)})")
        ins.text = ("s_waitcnt " + " ".join(parts)) if parts else ""


def need_states(p, c):
    n = 0
    vg = lambda s: {r for r in s if r[0] in "va" and r != "vcc"}
    sg = lambda s: {r for r in s if r[0] == "s" or r == "vcc"}
    if p.kind == "valu":
        pv, ps = vg(p.defs), sg(p.defs)
        if c.kind == "mfma" and pv & c.uses:
            n = max(n, 2)
        if c.kind == "valu":
            if pv & c.uses:
                if c.mn.startswith("v_permlane") or "_dpp" in c.mn:
                    n = max(n, 2)
                if c.mn.startswith(("v_readfirstlane", "v_readlane")):
                    n = max(n, 1)
                if p.mn in TRANS:
                    n = max(n, 1)
                if p.mn.startswith("v_dot2") and c.mn != p.mn:
                    n = max(n, 3)
            if p.mn.startswith("v_dot2") and pv & c.defs and c.mn != p.mn:
                n = max(n, 3)
            if ps & c.uses:
                n = max(n, 2)
        if c.kind in ("vmem", "ds") and p.mn.startswith("v_dot2") and pv & c.uses:
            n = max(n, 3)
        if c.kind == "vmem" and ps & c.uses:
            n = max(n, 5)
    if p.kind == "mfma":
        big = p.passes == 8
        if c.kind == "mfma":
            if p.defs & c.ab:
                n = max(n, 12 if big else 8)
            if p.defs & c.c and (p.defs != c.c or p.passes != c.passes):
                n = max(n, 10 if big else 6)
        elif c.kind in ("valu", "ds", "vmem"):
            if p.defs & (c.uses | c.defs):
                n = max(n, 12 if big else 8)
            if p.c & c.defs:
                n = max(n, 7 if big else 3)
    if p.kind == "salu" and "m0" in p.defs and c.kind == "vmem" and "m0" in c.uses:
        n = max(n, 1)
    if p.kind == "vmem" and p.mn in ("buffer_store_dwordx4", "buffer_store_dwordx3", "global_store_dwordx4"):
        data = regs_of(p.ops[0] if p.mn.startswith("buffer") else p.ops[1])
        if data & c.defs:
            n = max(n, 2)
    return n


def fix_hazards(trace):
    total = 0
    while True:
        changed = False
        win = []
        for seg in trace:
            for ins in seg.ins:
                if ins.states() == 0:
                    continue
                dist = ins.pad
                for p in reversed(win):
                    if dist >= 12:
                        break
                    nd = need_states(p, ins)
                    if nd > dist:
                        ins.pad += nd - dist
                        total += nd - dist
                        fix_hazards.log.append(f"{seg.name}: +{nd - dist} before '{ins.text}' after '{p.text}'")
                        dist = nd
                        changed = True
                    dist += p.states() + p.pad
                win.append(ins)
                if len(win) > 16:
                    win.pop(0)
        if not changed:
            return total


fix_hazards.log = []


def emit(segs):
    out = []
    for seg in segs:
        out.append(f"; ---- {seg.name}")
        for ins in seg.ins:
            p = ins.pad
            while p > 0:
                out.append(f"    s_nop {min(p, 16) - 1}")
                p -= 16
            if ins.text:
                out.append(ins.text if ins.label or ins.directive else "    " + ins.text)
    return "\n".join(out) + "\n"
```

```python
import sys, os, math, struct
sys.path.insert(0, os.path.dirname(os.path.abspath(__file__)))
from asmlib import *

NAME = "interleave_layers__sliding_local_dilated__glu_gated_reglu__prompt"

CFG = dict(alias=True, stamps=False, force_slow=False)

WS_BYTES = 268435456
O_BASE, O_GS = 0x0100000, 0x80000
X1_BASE, X1_GS = 0x0800000, 0x100000
H_BASE, H_GS = 0x1000000, 0x200000
X2_BASE = 0x2000000
S2_BASE = 0x2200000
S0_BASE, S0_GS = 0x2300000, 0x20000
ST_BASE = 0x3000000
F_QKV, F_WO, F_GU, F_DN, F_EXP = 0, 128, 256, 512, 640
OOB = 0x80000000
XBUF = 17408
REG = 4352

sG, sR, sW, sPAT, sTO = "s3", "s33", "s34", "s35", "s56"
WS, WSRD, XS, SS, DBG = "s[4:7]", "s[8:11]", "s[12:15]", "s[16:19]", "s[20:23]"
P_X, P_QKV, P_WO, P_G, P_U, P_D, P_OUT, P_DBG, P_WS = 36, 38, 40, 44, 46, 48, 50, 52, 54
sC, sNEED, sIN, sOUT, sCNT, sM0, sT0, sT1, sFB, sROW, sST, sEVT, sPF, sWO = (f"s{i}" for i in range(57, 71))
sSTAMP = "s72"
sK80 = "s73"
sT2, sT3 = "s74", "s75"
sINB, sOUTB = "s76", "s77"
sM1 = "s78"

vL, vT, vG, vL16, vP, vPA, vFA, vF, vTMP, vTMP2, vSTA, vTMP3 = (f"v{i}" for i in range(0, 12))
ONES = 12


def f32(x):
    return "0x%08x" % struct.unpack("<I", struct.pack("<f", x))[0]


def vr(b, n=4):
    return f"v[{b}:{b + n - 1}]"


def ar(b, n=4):
    return f"a[{b}:{b + n - 1}]"


def srd(dst, ptr, size, add=0):
    b = int(dst[2:dst.index(":")])
    o = []
    if add:
        o += [f"s_add_u32 s{b}, s{ptr}, {add}", f"s_addc_u32 s{b + 1}, s{ptr + 1}, 0"]
    else:
        o += [f"s_mov_b32 s{b}, s{ptr}", f"s_mov_b32 s{b + 1}, s{ptr + 1}"]
    o += [f"s_mov_b32 s{b + 2}, {size}", f"s_mov_b32 s{b + 3}, 0x20000"]
    return o


class Gen:
    def __init__(self, cfg):
        self.cfg = cfg
        self.layout = []
        self.cold = Seg("cold")
        self.traces = []
        self.uid = 0

    def seg(self, name):
        s = Seg(name)
        self.layout.append(s)
        return s

    def lab(self, p):
        self.uid += 1
        return f"L_{p}_{self.uid}"

    def stamp(self):
        if not self.cfg["stamps"]:
            return []
        return ["s_memrealtime s[80:81]", "s_waitcnt lgkmcnt(0)", f"v_mov_b32 {vTMP3}, s80",
                f"buffer_store_dword {vTMP3}, {vSTA}, {WS}, {sSTAMP} offen", f"s_add_u32 {sSTAMP}, {sSTAMP}, 4"]

    def poll_issue(self, soff):
        return (f"buffer_load_dword {vP}, {vPA}, {WS}, {soff} offen sc1", "poll")

    def poll_check(self, soff, publish=None):
        sp, ret = self.lab("spin"), self.lab("ret")
        c = self.cold
        c(f"{sp}:")
        if publish:
            c("s_waitcnt vmcnt(0)", publish)
        c(f"{sp}_l:", f"s_sub_u32 {sTO}, {sTO}, 1", "s_cbranch_scc1 L_exit",
          f"buffer_load_dword {vP}, {vPA}, {WS}, {soff} offen sc1", "s_waitcnt vmcnt(0)",
          f"v_cmp_gt_u32 vcc, {sNEED}, {vP}", f"s_cbranch_vccnz {sp}_l", f"s_branch {ret}")
        return [W(vm=["poll"]), f"v_cmp_gt_u32 vcc, {sNEED}, {vP}", f"s_cbranch_vccnz {sp}", f"{ret}:"]

    def hs_issue(self):
        return [f"v_lshlrev_b32 {vTMP}, 2, {vL}", (f"buffer_load_dword {vP}, {vTMP}, {DBG}, 0 offen sc1", "poll")]

    def hs_check(self):
        sp, ret = self.lab("hs"), self.lab("hsret")
        test = [f"v_and_b32 {vTMP2}, {sK80}, {vP}", f"v_cmp_ne_u32 vcc, {sK80}, {vTMP2}"]
        self.cold(f"{sp}:", f"s_sub_u32 {sTO}, {sTO}, 1", "s_cbranch_scc1 L_exit", "s_sleep 2",
                  f"v_lshlrev_b32 {vTMP}, 2, {vL}",
                  f"buffer_load_dword {vP}, {vTMP}, {DBG}, 0 offen sc1", "s_waitcnt vmcnt(0)", test,
                  f"s_cbranch_vccnz {sp}", f"s_branch {ret}")
        o = [W(vm=["poll"])] + test + [f"s_cbranch_vccnz {sp}", f"{ret}:",
                                       f"v_cmp_ne_u32 vcc, {sPAT}, {vP}", f"s_lshl_b32 {sT0}, {sG}, 3", "s_nop 3",
                                       f"s_lshr_b64 s[74:75], vcc, {sT0}", f"s_and_b32 {sT2}, {sT2}, 0xff"]
        if self.cfg["force_slow"]:
            o.append(f"s_mov_b32 {sT2}, 1")
        return o

    def flag_store(self, sc):
        return f"buffer_store_dword {vF}, {vFA}, {WS}, {sFB} offen{sc}"

    def announce_begin(self, flagoff_sreg, nlanes, extra=None):
        o = [f"v_lshlrev_b32 {vTMP}, 2, {vL}", f"v_add_u32 {vTMP}, {flagoff_sreg}, {vTMP}"]
        if extra:
            o += extra
        o += [f"s_cmp_eq_u32 {sW}, 0", f"s_cselect_b32 {sT0}, {nlanes}, 0", f"v_mov_b32 {vTMP2}, {OOB:#x}",
              f"v_cmp_gt_u32 vcc, {sT0}, {vL}", f"v_cndmask_b32 {vTMP}, {vTMP2}, {vTMP}, vcc",
              f"v_mov_b32 {vF}, 0", (f"buffer_store_dword {vF}, {vTMP}, {WS}, {sFB} offen sc1", "fz")]
        return o

    def announce_end(self):
        return [f"s_lshl_b32 {sT0}, {sG}, 5", f"s_add_u32 {sT0}, {sT0}, {sR}", f"s_cmp_eq_u32 {sW}, 0",
                f"s_cselect_b32 {sT0}, {sT0}, {OOB:#x}", f"v_mov_b32 {vTMP}, {sT0}", f"v_mov_b32 {vTMP2}, {OOB:#x}",
                f"v_cmp_eq_u32 vcc, 0, {vL}", f"v_cndmask_b32 {vTMP}, {vTMP2}, {vTMP}, vcc",
                f"v_mov_b32 {vTMP2}, {sPAT}", W(vm=["fz"]),
                f"buffer_store_byte {vTMP2}, {vTMP}, {DBG}, 0 offen sc1"]

    def lane0_addr(self, dst, sreg):
        return [f"v_mov_b32 {dst}, {sreg}", f"v_mov_b32 {vTMP2}, {OOB:#x}", f"v_cmp_eq_u32 vcc, 0, {vL}",
                f"v_cndmask_b32 {dst}, {vTMP2}, {dst}, vcc"]

    def adv(self, s, base, step, nrec):
        if self.cfg["alias"]:
            return [f"s_add_u32 {s}, {s}, {step}", f"s_and_b32 {s}, {s}, {~(step * 16) & 0xffffffff:#x}"]
        return [f"s_add_u32 {s}, {s}, {step}"]

    def entry(self):
        s = self.seg("entry")
        s(f"s_cmp_ge_u32 s2, 256", "s_cbranch_scc1 L_exit",
          "s_load_dwordx16 s[36:51], s[0:1], 0", "s_load_dwordx4 s[52:55], s[0:1], 64",
          f"s_and_b32 {sG}, s2, 7", f"s_lshr_b32 {sR}, s2, 3",
          "v_lshrrev_b32 v1, 6, v0", f"v_and_b32 {vL}, 63, v0", f"v_readfirstlane_b32 {sW}, v1",
          f"s_getreg_b32 {sPAT}, hwreg(HW_REG_XCC_ID)", f"s_and_b32 {sPAT}, {sPAT}, 15", f"s_or_b32 {sPAT}, {sPAT}, 0x80",
          f"s_mul_i32 {sPAT}, {sPAT}, 0x01010101", f"s_mov_b32 {sK80}, 0x80808080", f"s_mov_b32 {sTO}, 200000",
          f"v_and_b32 {vT}, 15, {vL}", f"v_lshrrev_b32 {vG}, 4, {vL}", f"v_lshlrev_b32 {vL16}, 4, {vL}",
          f"s_lshl_b32 {sFB}, {sG}, 10")
        for i in range(4):
            s(f"v_mov_b32 v{ONES + i}, 0x3f803f80")
        s("s_waitcnt lgkmcnt(0)", srd(WS, P_WS, WS_BYTES), srd(DBG, P_DBG, 256))
        if self.cfg["stamps"]:
            s(f"s_lshl_b32 {sT0}, s2, 2", f"s_add_u32 {sT0}, {sT0}, {sW}", f"s_lshl_b32 {sT0}, {sT0}, 8",
              f"s_add_u32 {sSTAMP}, {sT0}, {ST_BASE:#x}", f"s_mov_b32 {sT0}, 0", self.lane0_addr(vSTA, sT0), self.stamp())
        s(f"s_cmp_lt_u32 {sR}, 8", "s_cbranch_scc1 L_qkv", f"s_cmp_lt_u32 {sR}, 10", "s_cbranch_scc1 L_wo",
          f"s_cmp_lt_u32 {sR}, 24", "s_cbranch_scc1 L_gu", "s_branch L_dn")
        self.entry_seg = s

    def xreads(self, par, nt, faddr, XR, NX, RA, nk=16):
        fixed, st = {}, []

        def rd(p, s):
            a, off = faddr(p, s)
            r = XR + 4 * (s % NX)
            return (f"ds_read_b128 {vr(r)}, {a} offset:{off}", f"x{s}")
        bk = nk - RA
        for s in range(RA, nk):
            k = min(s - RA, bk - 2)
            st.append((nt * k, rd(par, s)))
        for s in range(nk):
            if s < bk:
                t = f"x{s}"
                fixed.setdefault(nt * s, []).append(W(lgkm=[t], prior=[t]) if s < RA else W(lgkm=[t], local=[t]))
        nxt = [(nt * (bk + s), rd(1 - par, s)) for s in range(RA)]
        return fixed, st, nxt, nt * bk

    def first_reads(self, faddr, XR, NX, RA, par):
        o = []
        for s in range(RA):
            a, off = faddr(par, s)
            o.append((f"ds_read_b128 {vr(XR + 4 * (s % NX))}, {a} offset:{off}", f"x{s}"))
        return o

    def finish(self, trace):
        self.traces.append([self.entry_seg] + trace)

    def gu(self):
        vW, vRG, vRC, vD4, vD16, vSA, vS, vOA = 16, 20, 21, 22, 23, 24, 26, 28
        CS, ACC, XR, TP, HB = 32, 48, 80, 112, 128
        NX, RA, D, NS, RING = 8, 3, 3, 4, 40960
        p = self.seg("gu_pro")
        p("L_gu:", f"s_sub_u32 {sC}, {sR}, 10", f"s_lshl_b32 {sT1}, {sC}, 4", f"s_add_u32 {sT1}, {sT1}, {F_GU}",
          self.announce_begin(sT1, 4))
        p(f"s_cmp_lt_u32 {sW}, 2", f"s_cselect_b32 s8, s{P_G}, s{P_U}", f"s_cselect_b32 s9, s{P_G + 1}, s{P_U + 1}",
          f"s_mov_b32 s10, {512 * 3584}", "s_mov_b32 s11, 0x20000")
        p(f"v_lshrrev_b32 {vTMP}, 3, {vL}", f"v_mul_u32_u24 v{vW}, 3584, {vTMP}",
          f"v_lshlrev_b32 {vTMP}, 1, {vTMP}", f"v_and_b32 {vTMP}, 4, {vTMP}", f"v_and_b32 {vTMP2}, 7, {vL}",
          f"v_xor_b32 {vTMP}, {vTMP}, {vTMP2}", f"v_lshl_add_u32 v{vW}, {vTMP}, 4, v{vW}",
          f"s_and_b32 {sT0}, {sW}, 1", f"s_lshl_b32 {sT0}, {sT0}, 7", f"s_lshl_b32 {sT1}, {sC}, 8",
          f"s_add_u32 {sT0}, {sT0}, {sT1}", f"v_add_u32 v{vW}, {sT0}, v{vW}")
        for q in range(1, 4):
            p(f"v_add_u32 v{vW + q}, {q * (8 * 3584 - 1024)}, v{vW}")
        p(f"s_lshl_b32 {sM0}, {sW}, 12", f"s_add_u32 {sM0}, {sM0}, {RING}", f"s_mov_b32 {sWO}, 0")

        def wstage(s):
            o = [f"s_add_u32 m0, {sM0}, {(s % NS) * 16384}", "s_nop 0"]
            o += [(f"buffer_load_dwordx4 v{vW + q}, {WSRD}, {sWO} offen offset:{q * 1024} lds", f"w{s}") for q in range(4)]
            o += [f"s_add_u32 {sWO}, {sWO}, {32 * 3584}"]
            return o
        p(wstage(0), wstage(1), self.announce_end(), wstage(2))
        p(f"v_lshrrev_b32 {vTMP}, 2, {vT}", f"v_lshl_add_u32 v{vRG}, {vG}, 3, {vTMP}", f"v_lshlrev_b32 v{vRG}, 7, v{vRG}",
          f"v_lshrrev_b32 {vTMP}, 1, {vTMP}", f"s_and_b32 {sT0}, {sW}, 1", f"v_xor_b32 {vTMP}, {sT0}, {vTMP}",
          f"v_lshl_add_u32 v{vRG}, {vTMP}, 6, v{vRG}", f"v_and_b32 {vTMP}, 3, {vL}",
          f"v_lshl_add_u32 v{vRG}, {vTMP}, 4, v{vRG}", f"s_lshr_b32 {sT0}, {sW}, 1", f"s_lshl_b32 {sT0}, {sT0}, 12",
          f"s_add_u32 {sT0}, {sT0}, {RING}", f"v_add_u32 v{vRG}, {sT0}, v{vRG}")
        p(f"s_mul_i32 {sT0}, {sW}, {REG}", f"v_lshl_add_u32 v{vD4}, {vL}, 2, {sT0}", f"v_add_u32 v{vD16}, {sT0}, {vL16}",
          f"s_mov_b32 {sM1}, {sT0}",
          f"v_mul_u32_u24 v{vSA}, {REG}, {vG}", f"v_lshl_add_u32 v{vSA}, {vT}, 2, v{vSA}", f"v_add_u32 v{vSA + 1}, {XBUF}, v{vSA}",
          f"v_min_u32 {vPA}, 7, {vL}", f"v_lshlrev_b32 {vPA}, 2, {vPA}", f"v_add_u32 {vPA}, {F_WO}, {vPA}",
          f"s_lshl_b32 {sT0}, {sC}, 2", f"s_add_u32 {sT0}, {sT0}, {sW}", f"s_lshl_b32 {sT1}, {sT0}, 10",
          f"v_add_u32 v{vOA}, {sT1}, {vL16}", f"s_lshl_b32 {sT0}, {sT0}, 2", f"s_add_u32 {sT0}, {sT0}, {F_GU}",
          self.lane0_addr(vFA, sT0),
          f"s_mul_i32 {sIN}, {sG}, {X1_GS:#x}", f"s_add_u32 {sIN}, {sIN}, {X1_BASE:#x}",
          f"s_mul_i32 {sOUT}, {sG}, {H_GS:#x}", f"s_add_u32 {sOUT}, {sOUT}, {H_BASE:#x}", f"s_mov_b32 {sNEED}, 1")
        for s in range(16):
            p(W(vm=[f"w{s}"]), "s_barrier")
            if s + D < 16:
                p(wstage(s + D))
            if s == 13:
                p(self.hs_issue())
            for t in range(4):
                for h in range(2):
                    off = (s % NS) * 16384 + (t // 2) * 8192 + (t % 2) * 8 + h * 512
                    p(f"ds_read_b64_tr_b16 {ar(16 * s + 4 * t + 2 * h, 2)}, v{vRG} offset:{off}")
            p("s_waitcnt lgkmcnt(0)")
            for t in range(4):
                c = "0" if s == 0 else vr(CS + 4 * t)
                p(f"v_mfma_f32_16x16x32_bf16 {vr(CS + 4 * t)}, {ar(16 * s + 4 * t)}, {vr(ONES)}, {c}")
        p(self.stamp(), self.hs_check())
        for i in range(16):
            p(f"v_mul_f32 v{CS + i}, {f32(-1 / 512)}, v{CS + i}")

        faddr = lambda par, s: (vL16, par * XBUF + (s // 4) * REG + 256 + (s % 4) * 1024)

        def dma(par):
            o = [f"s_add_u32 m0, {sM1}, {par * XBUF}", f"s_add_u32 {sNEED}, {sNEED}, 1",
                 (f"buffer_load_dword v{vD4}, {WS}, {sIN} offen sc1 lds", "dma")]
            o += [(f"buffer_load_dwordx4 v{vD16}, {WS}, {sIN} offen offset:{256 + 1024 * q} sc1 lds", "dma") for q in range(4)]
            return o + self.adv(sIN, None, 32768, 16)
        p(self.poll_issue(sFB), self.poll_check(sFB), dma(0), "s_waitcnt vmcnt(0)", "s_barrier",
          self.first_reads(faddr, XR, NX, RA, 0), self.stamp(),
          f"s_mov_b32 {sCNT}, 15", f"s_cmp_lg_u32 {sT2}, 0", "s_cbranch_scc1 L_gu_slow")

        def epilogue(par, sc):
            a = ACC + 16 * par
            o = []
            for t in range(2):
                for r in range(4):
                    o.append(f"v_fma_f32 v{TP + 4 * t + r}, v{vS + par}, v{CS + 4 * t + r}, v{a + 4 * t + r}")
            for t in range(2):
                for r in range(4):
                    o.append(f"v_fma_f32 v{TP + 8 + 4 * t + r}, v{vS + par}, v{CS + 8 + 4 * t + r}, v{a + 8 + 4 * t + r}")
                    o.append(f"v_max_f32 v{TP + 4 * t + r}, 0, v{TP + 4 * t + r}")
            for i in range(8):
                o.append(f"v_mul_f32 v{TP + i}, v{TP + i}, v{TP + 8 + i}")
            for i in range(4):
                o.append(f"v_cvt_pk_bf16_f32 v{HB + i}, v{TP + 2 * i}, v{TP + 2 * i + 1}")
            o.append((f"buffer_store_dwordx4 {vr(HB)}, v{vOA}, {WS}, {sOUT} offen{sc}", "out"))
            o.append(f"v_add_u32 {vF}, 1, {vF}")
            return o

        def stats(par):
            a, b = TP + 16 + 8, TP + 17 + 8
            return [(f"ds_read2_b32 v[{a}:{b}], v{vSA + par} offset0:0 offset1:32", "st"), W(lgkm=["st"]),
                    f"v_add_f32 v{a}, v{a}, v{b}", f"v_mov_b32 v{b}, v{a}", f"v_permlane16_swap_b32 v{a}, v{b}",
                    f"v_add_f32 v{a}, v{a}, v{b}", f"v_mov_b32 v{b}, v{a}", f"v_permlane32_swap_b32 v{a}, v{b}",
                    f"v_add_f32 v{vS + par}, v{a}, v{b}"]

        def body(name, par, epi, pre, sc):
            s = self.seg(name)
            bb = []
            for k in range(16):
                for t in range(4):
                    d = vr(ACC + 16 * par + 4 * t)
                    bb.append(f"v_mfma_f32_16x16x32_bf16 {d}, {ar(16 * k + 4 * t)}, {vr(XR + 4 * (k % NX))}, {'0' if k == 0 else d}")
            fixed, xs, nxt, bg = self.xreads(par, 4, faddr, XR, NX, RA)
            main = []
            if pre:
                main.append((1, self.poll_issue(sFB)))
            if epi:
                main += [(2, x) for x in epilogue(1 - par, sc)]
            if pre:
                main += [(20, x) for x in self.poll_check(sFB, self.flag_store(sc) if epi else None)]
                main += [(20, x) for x in dma(1 - par)]
            if epi:
                main += [(20, x) for x in self.adv(sOUT, None, 65536, 16)]
            stt = stats(par)
            st2 = [(30, stt[0])] + [(35, stt[1])] + [(35, x, 1 if i in (2, 5) else 0) for i, x in enumerate(stt[2:])]
            fl = [(46, W(vm=["out"], local=["out"])), (46, self.flag_store(sc))] if epi else []
            dm = ["dma"] if pre else []
            fixed.setdefault(bg, []).append(W(lgkm=["x15", "st"], vm=dm, local=["x15", "st"] + dm))
            if pre:
                fixed[bg].append("s_barrier")
                xs = xs + nxt
            s(self.stamp())
            s(weave(bb, fixed, [xs, main, st2, fl], name=name))
            return s

        for mode, sc in (("fast", ""), ("slow", " sc1")):
            if mode == "slow":
                self.seg("gu_slow_lab")("L_gu_slow:")
            b0 = body(f"gu_{mode}_b0", 0, False, True, sc)
            top = self.seg("top")(".p2align 4", f"L_gu_{mode}_loop:")
            b1 = body(f"gu_{mode}_odd", 1, True, True, sc)
            b2 = body(f"gu_{mode}_even", 0, True, True, sc)
            b2(f"s_sub_u32 {sCNT}, {sCNT}, 1", f"s_cmp_lg_u32 {sCNT}, 0", f"s_cbranch_scc1 L_gu_{mode}_loop")
            b3 = body(f"gu_{mode}_last", 1, True, False, sc)
            dr = self.seg(f"gu_{mode}_drain")
            dr(epilogue(1, sc), "s_waitcnt vmcnt(0)", self.flag_store(sc), self.stamp(), "s_endpgm")
            self.finish([p, b0, b1, b2, b1, b2, b3, dr])

    def wo(self):
        vW, vRP, vD16, vRA, vOA, vSO = 16, 20, 22, 23, 24, 25
        ACC, XR, RS, OB, TP = 48, 80, 112, 120, 128
        NX, RA, D, NS, RING = 8, 3, 3, 4, 40960
        p = self.seg("wo_pro")
        p("L_wo:", f"s_sub_u32 {sC}, {sR}, 8", f"s_lshl_b32 {sT1}, {sC}, 4", f"s_add_u32 {sT1}, {sT1}, {F_WO}",
          self.announce_begin(sT1, 4), srd(WSRD, P_WO, 512 * 1024),
          f"s_lshl_b32 {sC}, {sC}, 2", f"s_add_u32 {sC}, {sC}, {sW}")
        p(f"v_lshrrev_b32 {vTMP}, 3, {vL}", f"v_lshlrev_b32 v{vW}, 10, {vTMP}",
          f"v_lshlrev_b32 {vTMP}, 1, {vTMP}", f"v_and_b32 {vTMP}, 4, {vTMP}", f"v_and_b32 {vTMP2}, 7, {vL}",
          f"v_xor_b32 {vTMP}, {vTMP}, {vTMP2}", f"v_lshl_add_u32 v{vW}, {vTMP}, 4, v{vW}",
          f"s_lshl_b32 {sT0}, {sC}, 7", f"v_add_u32 v{vW}, {sT0}, v{vW}")
        for q in range(1, 4):
            p(f"v_add_u32 v{vW + q}, {q * (8192 - 1024)}, v{vW}")
        p(f"s_lshl_b32 {sM0}, {sW}, 14", f"s_add_u32 {sM0}, {sM0}, {RING}", f"s_mov_b32 {sWO}, 0")

        def wstage(s):
            o = [f"s_add_u32 m0, {sM0}, {(s % NS) * 4096}", "s_nop 0"]
            o += [(f"buffer_load_dwordx4 v{vW + q}, {WSRD}, {sWO} offen offset:{q * 1024} lds", f"w{s}") for q in range(4)]
            o += [f"s_add_u32 {sWO}, {sWO}, 32768"]
            return o
        p(wstage(0), wstage(1), self.announce_end(), wstage(2))
        p(f"v_lshrrev_b32 {vTMP}, 2, {vT}", f"v_lshl_add_u32 v{vRP}, {vG}, 3, {vTMP}", f"v_lshlrev_b32 v{vRP}, 7, v{vRP}",
          f"v_lshrrev_b32 {vTMP}, 1, {vTMP}", f"v_lshl_add_u32 v{vRP}, {vTMP}, 6, v{vRP}", f"v_and_b32 {vTMP}, 3, {vL}",
          f"v_lshl_add_u32 v{vRP}, {vTMP}, 4, v{vRP}", f"v_add_u32 v{vRP}, {sM0}, v{vRP}", f"v_xor_b32 v{vRP + 1}, 64, v{vRP}")
        p(f"s_lshl_b32 {sM1}, {sW}, 12", f"v_add_u32 v{vD16}, {sM1}, {vL16}",
          f"v_lshlrev_b32 v{vRA}, 10, {vT}", f"v_lshl_add_u32 v{vRA}, {vG}, 4, v{vRA}", f"s_lshl_b32 {sT0}, {sC}, 7",
          f"v_add_u32 v{vRA}, {sT0}, v{vRA}",
          f"s_lshr_b32 {sT0}, {sC}, 1", f"s_mul_i32 {sT0}, {sT0}, {REG}", f"s_and_b32 {sT1}, {sC}, 1",
          f"s_lshl_b32 {sT3}, {sT1}, 11", f"s_add_u32 {sT3}, {sT3}, {sT0}", f"v_add_u32 v{vOA}, {sT3}, {vL16}",
          f"s_lshl_b32 {sT3}, {sT1}, 7", f"s_add_u32 {sT3}, {sT3}, {sT0}", f"v_lshl_add_u32 v{vSO}, {vL}, 2, {sT3}",
          f"v_mov_b32 {vTMP2}, {OOB:#x}", f"v_cmp_gt_u32 vcc, 32, {vL}", f"v_cndmask_b32 v{vSO}, {vTMP2}, v{vSO}, vcc",
          f"v_and_b32 {vPA}, 31, {vL}", f"v_lshlrev_b32 {vPA}, 2, {vPA}",
          f"s_lshl_b32 {sT0}, {sC}, 2", f"s_add_u32 {sT0}, {sT0}, {F_WO}", self.lane0_addr(vFA, sT0),
          f"s_mul_i32 {sIN}, {sG}, {O_GS:#x}", f"s_add_u32 {sIN}, {sIN}, {O_BASE:#x}",
          f"s_mul_i32 {sOUT}, {sG}, {X1_GS:#x}", f"s_add_u32 {sOUT}, {sOUT}, {X1_BASE:#x}", f"s_mov_b32 {sNEED}, 1",
          f"s_lshl_b32 {sROW}, {sG}, 18", srd(XS, P_X, 2097152))
        for s in range(16):
            p(W(vm=[f"w{s}"]))
            if s + D < 16:
                p(wstage(s + D))
            if s == 13:
                p(self.hs_issue())
            for t in range(4):
                for h in range(2):
                    off = (s % NS) * 4096 + (t % 2) * 8 + h * 512
                    p(f"ds_read_b64_tr_b16 {ar(16 * s + 4 * t + 2 * h, 2)}, v{vRP + t // 2} offset:{off}")
            p("s_waitcnt lgkmcnt(0)")
        p(self.stamp(), self.hs_check())

        faddr = lambda par, s: (vL16, par * XBUF + s * 1024)

        def dma(par):
            o = [f"s_add_u32 m0, {sM1}, {par * XBUF}", f"s_add_u32 {sNEED}, {sNEED}, 1"]
            o += [(f"buffer_load_dwordx4 {vr(RS + 4 * h)}, v{vRA}, {XS}, {sROW} offen offset:{64 * h} sc1", "res") for h in range(2)]
            o += [(f"buffer_load_dwordx4 v{vD16}, {WS}, {sIN} offen offset:{1024 * q} sc1 lds", "dma") for q in range(4)]
            o += self.adv(sIN, None, 16384, 16)
            o += [f"s_add_u32 {sROW}, {sROW}, 16384", f"s_and_b32 {sROW}, {sROW}, 0x1fffff"]
            return o

        def cinit(par):
            a = ACC + 16 * par
            o = [W(vm=["res"], local=["res"])]
            for i in range(8):
                o.append(f"v_lshlrev_b32 v{a + 2 * i}, 16, v{RS + i}")
                o.append(f"v_and_b32 v{a + 2 * i + 1}, 0xffff0000, v{RS + i}")
            return o
        p(self.poll_issue(sFB), self.poll_check(sFB), dma(0), cinit(0), "s_waitcnt vmcnt(0)", "s_barrier",
          self.first_reads(faddr, XR, NX, RA, 0), self.stamp(),
          f"s_mov_b32 {sCNT}, 15", f"s_cmp_lg_u32 {sT2}, 0", "s_cbranch_scc1 L_wo_slow")

        def epilogue(par, sc):
            a = ACC + 16 * par
            o = []
            for h in range(2):
                for i in range(4):
                    o.append(f"v_cvt_pk_bf16_f32 v{OB + 4 * h + i}, v{a + 8 * h + 2 * i}, v{a + 8 * h + 2 * i + 1}")
                o.append((f"buffer_store_dwordx4 {vr(OB + 4 * h)}, v{vOA}, {WS}, {sOUT} offen offset:{256 + 1024 * h}{sc}", "out"))
            s_, q_, t_ = TP, TP + 1, TP + 2
            o += [f"v_add_f32 v{s_}, v{a}, v{a + 1}", f"v_mul_f32 v{q_}, v{a}, v{a}", f"v_fmac_f32 v{q_}, v{a + 1}, v{a + 1}"]
            for i in range(2, 16):
                o += [f"v_add_f32 v{s_}, v{s_}, v{a + i}", f"v_fmac_f32 v{q_}, v{a + i}, v{a + i}"]
            o += [f"v_add_u32 {vF}, 1, {vF}",
                  f"v_permlane16_swap_b32 v{s_}, v{q_}", f"v_add_f32 v{s_}, v{s_}, v{q_}", f"v_mov_b32 v{t_}, v{s_}",
                  f"v_permlane32_swap_b32 v{s_}, v{t_}", f"v_add_f32 v{s_}, v{s_}, v{t_}",
                  (f"buffer_store_dword v{s_}, v{vSO}, {WS}, {sOUT} offen{sc}", "out")]
            return o

        def body(name, par, epi, pre, sc):
            s = self.seg(name)
            bb = []
            for k in range(16):
                for t in range(4):
                    d = vr(ACC + 16 * par + 4 * t)
                    bb.append(f"v_mfma_f32_16x16x32_bf16 {d}, {ar(16 * k + 4 * t)}, {vr(XR + 4 * (k % NX))}, {d}")
            fixed, xs, nxt, bg = self.xreads(par, 4, faddr, XR, NX, RA)
            pl = []
            if pre:
                pl.append((1, self.poll_issue(sFB)))
                pl += [(19, x) for x in self.poll_check(sFB)]
                pl += [(19, x) for x in dma(1 - par)]
            main = []
            if epi:
                main += [(2, x, 1 if "permlane" in str(x) else 0) for x in epilogue(1 - par, sc)]
                main += [(2, x) for x in self.adv(sOUT, None, 32768, 16)]
            if pre:
                main += [(44, x) for x in cinit(1 - par)]
            if epi:
                main += [(58, W(vm=["out"])), (58, self.flag_store(sc))]
            dm = ["dma"] if pre else []
            fixed.setdefault(bg, []).append(W(lgkm=["x15"], vm=dm, local=["x15"] + dm))
            if pre:
                fixed[bg].append("s_barrier")
                xs = xs + nxt
            s(self.stamp())
            s(weave(bb, fixed, [xs, pl, main], name=name))
            return s

        for mode, sc in (("fast", ""), ("slow", " sc1")):
            if mode == "slow":
                self.seg("wo_slow_lab")("L_wo_slow:")
            b0 = body(f"wo_{mode}_b0", 0, False, True, sc)
            self.seg("top")(".p2align 4", f"L_wo_{mode}_loop:")
            b1 = body(f"wo_{mode}_odd", 1, True, True, sc)
            b2 = body(f"wo_{mode}_even", 0, True, True, sc)
            b2(f"s_sub_u32 {sCNT}, {sCNT}, 1", f"s_cmp_eq_u32 {sCNT}, 8", f"s_cbranch_scc1 L_wo_{mode}_sw",
               f"s_cmp_lg_u32 {sCNT}, 0", f"s_cbranch_scc1 L_wo_{mode}_loop")
            self.cold(f"L_wo_{mode}_sw:", srd(XS, P_WS, 2097152, X2_BASE), f"s_lshl_b32 {sROW}, {sG}, 18",
                      f"s_add_u32 {sROW}, {sROW}, 16384", f"s_branch L_wo_{mode}_loop")
            b3 = body(f"wo_{mode}_last", 1, True, False, sc)
            dr = self.seg(f"wo_{mode}_drain")
            dr(epilogue(1, sc), "s_waitcnt vmcnt(0)", self.flag_store(sc), self.stamp(), "s_endpgm")
            self.finish([p, b0, b1, b2, b1, b2, b3, dr])

    def dn(self):
        vW, vRT, vXA, vMA, vPW, vPR, vRR, vSR, vOA, vSO, vEA = 16, 20, 24, 28, 29, 30, 31, 32, 33, 34, 35
        R2, RES, ACC, XR, RD, TP, XL = 36, 40, 48, 80, 136, 152, 168
        D, NS, RING, MISC, PB = 3, 4, 49152, 34816, 17408
        P = 26
        p = self.seg("dn_pro")
        p("L_dn:", f"s_sub_u32 {sC}, {sR}, 24", f"s_lshl_b32 {sT1}, {sC}, 4", f"s_add_u32 {sT1}, {sT1}, {F_DN}",
          self.announce_begin(sT1, 8, [f"v_and_b32 {vTMP2}, 4, {vL}", f"v_mul_u32_u24 {vTMP2}, {(F_EXP - F_DN - 16) // 4}, {vTMP2}",
                                       f"v_add_u32 {vTMP}, {vTMP}, {vTMP2}"]),
          srd(WSRD, P_D, 1792 * 1024), srd(XS, P_X, 2097152))
        p(f"v_lshrrev_b32 {vTMP}, 3, {vL}", f"v_lshlrev_b32 v{vW}, 10, {vTMP}", f"v_and_b32 {vTMP2}, 7, {vL}",
          f"v_lshl_add_u32 v{vXA}, {vTMP2}, 4, v{vW}", f"s_lshl_b32 {sT0}, {sC}, 7", f"v_add_u32 v{vXA}, {sT0}, v{vXA}",
          f"v_add_u32 v{vXA + 1}, 8192, v{vXA}",
          f"s_lshl_b32 {sROW}, {sG}, 4", f"s_add_u32 {sROW}, {sROW}, {sW}", f"s_add_u32 {sROW}, {sROW}, 127",
          f"s_lshl_b32 {sROW}, {sROW}, 14")
        for i in range(5):
            p(f"s_and_b32 {sT0}, {sROW}, 0x1fffff")
            for h in range(2):
                p((f"buffer_load_dwordx4 {vr(XL + 8 * i + 4 * h)}, v{vXA + h}, {XS}, {sT0} offen", f"x0_{i}"))
            p(f"s_add_u32 {sROW}, {sROW}, 65536")
        p(self.announce_end())
        p(f"v_lshrrev_b32 {vTMP}, 3, {vL}", f"v_and_b32 {vTMP}, 2, {vTMP}", f"v_and_b32 {vTMP2}, 7, {vL}",
          f"v_xor_b32 {vTMP}, {vTMP}, {vTMP2}", f"v_lshl_add_u32 v{vW}, {vTMP}, 4, v{vW}",
          f"s_lshl_b32 {sT0}, {sC}, 7", f"v_add_u32 v{vW}, {sT0}, v{vW}",
          f"v_xor_b32 v{vW + 1}, 64, v{vW}", f"v_add_u32 v{vW + 3}, {3 * 7168}, v{vW + 1}",
          f"v_add_u32 v{vW + 1}, 7168, v{vW + 1}", f"v_add_u32 v{vW + 2}, {2 * 7168}, v{vW}",
          f"s_lshl_b32 {sM0}, {sW}, 14", f"s_add_u32 {sM0}, {sM0}, {RING}", f"s_mul_i32 {sWO}, {sW}, {14 * 32768}")
        p(self.hs_issue())
        p(f"v_lshrrev_b32 {vTMP}, 3, {vL}", f"v_and_b32 {vTMP2}, 7, {vL}", f"v_lshlrev_b32 v{vSO}, 2, {vTMP}",
          f"v_lshl_add_u32 v{vSO}, {vTMP2}, 6, v{vSO}", f"s_lshl_b32 {sT0}, {sC}, 7", f"v_add_u32 v{vSO}, {sT0}, v{vSO}",
          f"v_cmp_gt_u32 vcc, 2, {vTMP2}", f"v_mov_b32 {vTMP}, {OOB:#x}", f"v_cndmask_b32 v{vSO}, {vTMP}, v{vSO}, vcc",
          f"v_cmp_eq_u32 s[30:31], 1, {vTMP2}")
        dppm = "row_mask:0xf bank_mask:0xf"
        for i in range(5):
            p(W(vm=[f"x0_{i}"]))
            for h in range(2):
                x, s_, q_ = XL + 8 * i + 4 * h, TP + 2 * h, TP + 2 * h + 1
                for k in range(4):
                    p(f"v_dot2_f32_bf16 v{s_}, v{x + k}, v{ONES}, {'0' if k == 0 else f'v{s_}'}",
                      f"v_dot2_f32_bf16 v{q_}, v{x + k}, v{x + k}, {'0' if k == 0 else f'v{q_}'}")
            for pat in ("quad_perm:[1,0,3,2]", "quad_perm:[2,3,0,1]", "row_half_mirror"):
                for j in range(4):
                    p(f"v_add_f32_dpp v{TP + j}, v{TP + j}, v{TP + j} {pat} {dppm}")
            for h in range(2):
                p(f"v_cndmask_b32 v{XL + 8 * i + h}, v{TP + 2 * h}, v{TP + 2 * h + 1}, s[30:31]")
        p(self.hs_check())
        p(f"s_lshl_b32 {sT0}, {sC}, 2", f"s_add_u32 {sT0}, {sT0}, {sW}", f"s_lshl_b32 {sT0}, {sT0}, 2",
          f"s_add_u32 {sT0}, {sT0}, {F_DN}", self.lane0_addr(vFA, sT0), f"v_add_u32 v{vEA}, {F_EXP - F_DN}, {vFA}",
          f"s_lshl_b32 {sROW}, {sG}, 4", f"s_add_u32 {sROW}, {sROW}, {sW}", f"s_add_u32 {sROW}, {sROW}, 127",
          f"s_lshl_b32 {sROW}, {sROW}, 10", f"s_mul_i32 {sT1}, {sG}, {S0_GS:#x}", f"s_add_u32 {sT1}, {sT1}, {S0_BASE:#x}",
          f"v_mov_b32 {vF}, 17", f"s_cmp_lg_u32 {sT2}, 0", "s_cbranch_scc1 L_dn_s0slow")

        def s0out(seg, sc):
            for i in range(5):
                seg(f"s_and_b32 {sT0}, {sROW}, 0x1ffff", f"s_add_u32 {sT0}, {sT0}, {sT1}")
                for h in range(2):
                    seg(f"buffer_store_dword v{XL + 8 * i + h}, v{vSO}, {WS}, {sT0} offen offset:{32 * h}{sc}")
                seg(f"s_add_u32 {sROW}, {sROW}, 4096")
            seg("s_waitcnt vmcnt(0)", self.flag_store(sc))
        s0out(p, "")
        p("L_dn_s0done:")
        self.cold("L_dn_s0slow:")
        s0out(self.cold, " sc1")
        self.cold("s_branch L_dn_s0done")
        p(self.stamp())

        def wstage(s):
            o = [f"s_add_u32 m0, {sM0}, {(s % NS) * 4096}", "s_nop 0"]
            o += [(f"buffer_load_dwordx4 v{vW + q}, {WSRD}, {sWO} offen offset:{q * 1024} lds", f"w{s}") for q in range(4)]
            o += [f"s_add_u32 {sWO}, {sWO}, 32768"]
            return o
        for s in range(D):
            p(wstage(s))
        p(f"v_lshrrev_b32 {vTMP}, 2, {vT}", f"v_lshl_add_u32 v{vRT}, {vG}, 3, {vTMP}", f"v_lshlrev_b32 v{vRT}, 7, v{vRT}",
          f"v_lshrrev_b32 {vTMP}, 1, {vTMP}", f"v_and_b32 {vTMP2}, 1, {vG}", f"v_lshl_add_u32 {vTMP}, {vTMP2}, 1, {vTMP}",
          f"v_lshl_add_u32 v{vRT}, {vTMP}, 5, v{vRT}", f"v_and_b32 {vTMP}, 3, {vL}",
          f"v_lshl_add_u32 v{vRT}, {vTMP}, 3, v{vRT}", f"v_add_u32 v{vRT}, {sM0}, v{vRT}")
        for t in range(1, 4):
            p(f"v_xor_b32 v{vRT + t}, {32 * t}, v{vRT}")
        p(f"s_mul_i32 {sT0}, {sW}, {14 * 1024}", f"v_add_u32 v{vXA}, {sT0}, {vL16}")
        for q in range(1, 4):
            p(f"v_add_u32 v{vXA + q}, {4096 * q}, v{vXA}")
        p(f"s_lshr_b32 {sT0}, {sC}, 1", f"s_mul_i32 {sT0}, {sT0}, {REG}", f"s_and_b32 {sT1}, {sC}, 1", f"s_lshl_b32 {sT1}, {sT1}, 11",
          f"s_add_u32 {sT0}, {sT0}, {sT1}", f"s_lshl_b32 {sT1}, {sW}, 9", f"s_add_u32 {sT0}, {sT0}, {sT1}", f"s_add_u32 {sT0}, {sT0}, 256",
          f"v_add_u32 v{vMA}, {sT0}, {vL16}", f"s_mul_i32 {sT0}, {sW}, {REG}", f"v_lshl_add_u32 {vTMP}, {vT}, 4, {sT0}",
          f"v_cmp_gt_u32 vcc, 32, {vL}", f"v_cndmask_b32 v{vMA}, {vTMP}, v{vMA}, vcc",
          f"v_mov_b32 {vTMP}, {OOB:#x}", f"v_cmp_gt_u32 vcc, 48, {vL}", f"v_cndmask_b32 v{vMA}, {vTMP}, v{vMA}, vcc",
          f"s_lshl_b32 {sM1}, {sW}, 10", f"s_add_u32 {sM1}, {sM1}, {MISC}")
        p(f"s_mul_i32 {sT0}, {sW}, {REG}", f"v_mul_u32_u24 v{vPW}, 272, {vT}", f"v_lshl_add_u32 v{vPW}, {vG}, 4, v{vPW}",
          f"v_add_u32 v{vPW}, {sT0}, v{vPW}",
          f"s_lshl_b32 {sT0}, {sW}, 2", f"v_add_u32 {vTMP3}, {sT0}, {vG}",
          f"v_mul_u32_u24 v{vPR}, 272, {vTMP3}", f"v_lshl_add_u32 v{vPR}, {vT}, 4, v{vPR}",
          f"v_lshrrev_b32 {vTMP}, 2, {vT}", f"v_lshlrev_b32 v{vRR}, 10, {vTMP}", f"v_add_u32 v{vRR}, {MISC}, v{vRR}",
          f"v_and_b32 {vTMP}, 3, {vT}", f"v_lshl_add_u32 v{vSR}, {vTMP}, 6, v{vRR}", f"v_lshl_add_u32 v{vSR}, {vTMP3}, 2, v{vSR}",
          f"v_and_b32 {vTMP}, 2, {vT}", f"v_lshl_add_u32 v{vRR}, {vTMP}, 7, v{vRR}", f"v_lshl_add_u32 v{vRR}, {vTMP3}, 4, v{vRR}",
          f"v_and_b32 {vTMP}, 1, {vT}", f"v_lshl_add_u32 v{vRR}, {vTMP}, 3, v{vRR}",
          f"v_lshlrev_b32 v{vOA}, 10, {vTMP3}", f"v_lshl_add_u32 v{vOA}, {vT}, 3, v{vOA}", f"s_lshl_b32 {sT0}, {sC}, 7",
          f"v_add_u32 v{vOA}, {sT0}, v{vOA}",
          f"v_lshlrev_b32 v{vSO}, 2, {vTMP3}", f"v_lshl_add_u32 v{vSO}, {vT}, 6, v{vSO}", f"v_add_u32 v{vSO}, {sT0}, v{vSO}",
          f"v_mov_b32 {vTMP}, {OOB:#x}", f"v_cmp_gt_u32 vcc, 2, {vT}", f"v_cndmask_b32 v{vSO}, {vTMP}, v{vSO}, vcc",
          f"v_and_b32 {vTMP}, 1, {vT}", f"v_cmp_eq_u32 s[30:31], 1, {vTMP}",
          f"v_min_u32 {vPA}, 13, {vL}", f"s_mul_i32 {sT0}, {sW}, 56", f"s_add_u32 {sT0}, {sT0}, {F_GU}",
          f"v_lshl_add_u32 {vPA}, {vPA}, 2, {sT0}",
          f"s_mul_i32 {sIN}, {sG}, {H_GS:#x}", f"s_add_u32 {sIN}, {sIN}, {H_BASE:#x}",
          f"s_mul_i32 {sINB}, {sG}, {X1_GS:#x}", f"s_add_u32 {sINB}, {sINB}, {X1_BASE:#x}", f"s_mov_b32 {sNEED}, 1",
          f"s_lshl_b32 {sROW}, {sG}, 18", f"s_lshl_b32 {sST}, {sG}, 14", f"s_add_u32 {sST}, {sST}, {S2_BASE:#x}",
          srd(XS, P_WS, 2097152, X2_BASE))
        for s in range(14):
            p(W(vm=[f"w{s}"]))
            if s + D < 14:
                p(wstage(s + D))
            for t in range(4):
                for h in range(2):
                    p(f"ds_read_b64_tr_b16 {ar(16 * s + 4 * t + 2 * h, 2)}, v{vRT + t} offset:{(s % NS) * 4096 + h * 512}")
            p("s_waitcnt lgkmcnt(0)")
        p(self.stamp())

        def xload(s):
            return (f"buffer_load_dwordx4 {vr(XR + 4 * s)}, v{vXA + s // 4}, {WS}, {sIN} offen offset:{(s % 4) * 1024} sc1", f"x{s}")

        def misc(par):
            return [f"s_add_u32 m0, {sM1}, {par * 4096}", f"s_add_u32 {sNEED}, {sNEED}, 1",
                    (f"buffer_load_dwordx4 v{vMA}, {WS}, {sINB} offen sc1 lds", "misc")] + self.adv(sINB, None, 32768, 16)
        NE = (56 - P + 3) // 4
        p(self.poll_issue(sFB), self.poll_check(sFB), misc(0), [xload(s) for s in range(NE)], self.stamp(),
          f"s_mov_b32 {sCNT}, 7", f"s_cmp_lg_u32 {sT2}, 0", "s_cbranch_scc1 L_dn_slow")

        def epi_a(par):
            a = ACC + 16 * par
            return [(f"ds_write_b128 v{vPW}, {vr(a + 4 * t)} offset:{par * PB + 64 * t}", "pw") for t in range(4)]

        def epi_b(par, sc, stats, export):
            o = [(f"ds_read_b128 {vr(RD + 4 * w)}, v{vPR} offset:{par * PB + REG * w}", f"pr{w}") for w in range(4)]
            o.append(W(lgkm=["pr1"]))
            o += [f"v_add_f32 v{RD + i}, v{RD + i}, v{RD + 4 + i}" for i in range(4)]
            o.append(W(lgkm=["pr3"]))
            o += [f"v_add_f32 v{RD + 8 + i}, v{RD + 8 + i}, v{RD + 12 + i}" for i in range(4)]
            o += [f"v_add_f32 v{RD + i}, v{RD + i}, v{RD + 8 + i}" for i in range(4)]
            o += [f"v_fma_f32 v{RD + i}, v{RD + i}, v{R2 + par}, v{RES + 4 * par + i}" for i in range(4)]
            o += [f"v_cvt_pk_bf16_f32 v{RD + 4 + i}, v{RD + 2 * i}, v{RD + 2 * i + 1}" for i in range(2)]
            dsc = " sc1" if export else sc
            o.append((f"buffer_store_dwordx2 {vr(RD + 4, 2)}, v{vOA}, {XS}, {sROW} offen{dsc}", "out"))
            o += [f"s_add_u32 {sROW}, {sROW}, 16384"]
            if not stats:
                o += [f"s_and_b32 {sROW}, {sROW}, 0x1fffff"]
                return o
            s_, q_ = RD + 8, RD + 9
            o += [f"v_add_f32 v{s_}, v{RD}, v{RD + 1}", f"v_mul_f32 v{q_}, v{RD}, v{RD}", f"v_fmac_f32 v{q_}, v{RD + 1}, v{RD + 1}"]
            for i in (2, 3):
                o += [f"v_add_f32 v{s_}, v{s_}, v{RD + i}", f"v_fmac_f32 v{q_}, v{RD + i}, v{RD + i}"]
            o += [f"v_add_u32 {vF}, 1, {vF}",
                  f"v_add_f32_dpp v{s_}, v{s_}, v{s_} quad_perm:[1,0,3,2] {dppm}",
                  f"v_add_f32_dpp v{q_}, v{q_}, v{q_} quad_perm:[1,0,3,2] {dppm}",
                  f"v_cndmask_b32 v{s_}, v{s_}, v{q_}, s[30:31]"]
            o += [f"v_add_f32_dpp v{s_}, v{s_}, v{s_} row_ror:{n} {dppm}" for n in (2, 4, 8)]
            o += [(f"buffer_store_dword v{s_}, v{vSO}, {WS}, {sST} offen{dsc}", "out"), f"s_add_u32 {sST}, {sST}, 1024"]
            return o

        def prep(par):
            a, b, c = TP, TP + 1, TP + 2
            r = RES + 4 * par
            o = [(f"ds_read_b32 v{a}, v{vSR} offset:{par * 4096 + 512}", "ms"),
                 (f"ds_read_b64 v[{TP + 4}:{TP + 5}], v{vRR} offset:{par * 4096}", "mr"), W(lgkm=["mr"])]
            o += [f"v_add_f32_dpp v{a}, v{a}, v{a} row_ror:2 {dppm}",
                  f"v_lshlrev_b32 v{r}, 16, v{TP + 4}", f"v_and_b32 v{r + 1}, 0xffff0000, v{TP + 4}",
                  f"v_add_f32_dpp v{a}, v{a}, v{a} row_ror:4 {dppm}",
                  f"v_lshlrev_b32 v{r + 2}, 16, v{TP + 5}", f"v_and_b32 v{r + 3}, 0xffff0000, v{TP + 5}",
                  f"v_add_f32_dpp v{a}, v{a}, v{a} row_ror:8 {dppm}",
                  f"v_mul_f32 v{a}, {f32(1 / 512)}, v{a}",
                  f"v_mov_b32_dpp v{b}, v{a} quad_perm:[0,0,2,2] {dppm}", f"v_mov_b32_dpp v{c}, v{a} quad_perm:[1,1,3,3] {dppm}",
                  f"v_fma_f32 v{c}, -v{b}, v{b}, v{c}", f"v_max_f32 v{c}, 0, v{c}", f"v_add_f32 v{c}, {f32(1e-5)}, v{c}",
                  f"v_rcp_f32 v{R2 + par}, v{c}"]
            return o

        def body(name, par, epi, pre, sc, stats=True, export=False):
            s = self.seg(name)
            bb = []
            for k in range(14):
                for t in range(4):
                    d = vr(ACC + 16 * par + 4 * t)
                    bb.append(f"v_mfma_f32_16x16x32_bf16 {d}, {ar(16 * k + 4 * t)}, {vr(XR + 4 * k)}, {'0' if k == 0 else d}")
            fixed = {4 * k: [W(vm=[f"x{k}"], prior=[f"x{k}"]) if k < NE else W(vm=[f"x{k}"], local=[f"x{k}"])] for k in range(14)}
            ld = []
            if pre:
                ld.append((0, self.poll_issue(sFB)))
            ld += [(P + 4 * k - 56, xload(k)) for k in range(NE, 14)]
            if pre:
                ld += [(P - 3, x) for x in self.poll_check(sFB)]
                ld += [(P - 3, x) for x in self.adv(sIN, None, 65536, 16)]
                ld += [(P - 3, x) for x in misc(1 - par)]
                ld += [(max(P + 4 * k, 4 * k + 3), xload(k)) for k in range(NE)]
            main = []
            if epi:
                main += [(2, x) for x in epi_a(1 - par)]
            main += [(9, W(lgkm=["pw", "mr"], vm=["misc"], prior=["misc"])), (9, "s_barrier")]
            if epi:
                eb = epi_b(1 - par, sc, stats, export)
                main += [(9, x, 4 if isinstance(x, I) and i == 4 else (1 if "_dpp" in str(x) else 0)) for i, x in enumerate(eb)]
            pr = prep(par)
            main += [(9, x, 4 if i == 2 else (1 if i == 11 else 0)) for i, x in enumerate(pr)]
            if epi and stats:
                main += [(54, W(vm=["out"])), (54, self.flag_store(sc))]
                if export:
                    main += [(54, f"v_mov_b32 {vTMP}, 64"), (54, f"buffer_store_dword {vTMP}, v{vEA}, {WS}, {sFB} offen sc1")]
            s(self.stamp())
            s(weave(bb, fixed, [ld, main], name=name))
            return s

        tails = []
        for mode, sc in (("fast", ""), ("slow", " sc1")):
            if mode == "slow":
                self.seg("dn_slow_lab")("L_dn_slow:")
            b0 = body(f"dn_{mode}_b0", 0, False, True, sc)
            b1 = body(f"dn_{mode}_b1", 1, True, True, sc, export=True)
            self.seg("top")(".p2align 4", f"L_dn_{mode}_loop:")
            b2 = body(f"dn_{mode}_even", 0, True, True, sc)
            b3 = body(f"dn_{mode}_odd", 1, True, True, sc)
            b3(f"s_sub_u32 {sCNT}, {sCNT}, 1", f"s_cmp_lg_u32 {sCNT}, 0", f"s_cbranch_scc1 L_dn_{mode}_loop")
            b16 = body(f"dn_{mode}_b16", 0, True, True, sc)
            if mode == "fast":
                sw = self.seg("dn_sw")
                sw("L_dn_p2:", srd(XS, P_OUT, 2097152), f"s_lshl_b32 {sROW}, {sG}, 18", f"s_add_u32 {sROW}, {sROW}, 16384",
                   f"s_mov_b32 {sCNT}, 7")
                self.seg("top")(".p2align 4", "L_dn_loop2:")
                c1 = body("dn_p2_odd", 1, True, True, "", stats=False)
                c2 = body("dn_p2_even", 0, True, True, "", stats=False)
                c2(f"s_sub_u32 {sCNT}, {sCNT}, 1", f"s_cmp_lg_u32 {sCNT}, 0", "s_cbranch_scc1 L_dn_loop2")
                c3 = body("dn_p2_last", 1, True, False, "", stats=False)
                dr = self.seg("dn_drain")
                dr(epi_a(1), "s_waitcnt lgkmcnt(0)", "s_barrier", epi_b(1, "", False, False), "s_waitcnt vmcnt(0)",
                   self.stamp(), "s_endpgm")
                tails = [sw, c1, c2, c1, c2, c3, dr]
            else:
                b16("s_branch L_dn_p2")
            self.finish([p, b0, b1, b2, b3, b2, b3, b16] + tails)

    def qkv(self):
        vW, vRT, vXD, vXA, vD4, vSA, vOA, vOAK, vMW, vMR = 16, 17, 18, 22, 26, 27, 29, 30, 31, 32
        CSQ, CSK, CSV, BP, BO, BN = 36, 40, 44, 48, 52, 56
        ACC, XR = 64, 96
        SV, MR, QB, KB, VB, PB_, SP, SO_, OO, LL, TP = 128, 136, 152, 156, 160, 164, 168, 172, 176, 180, 184
        NX, RA, D, NS, RING, SCR = 8, 3, 3, 4, 40960, 36864
        CSC = 0.25 * math.log2(math.e)
        p = self.seg("qkv_pro")
        p("L_qkv:", f"s_lshl_b32 {sT1}, {sR}, 4", self.announce_begin(sT1, 4),
          srd(WSRD, P_QKV, 512 * 3072), srd(XS, P_X, 2097152))
        p(f"v_lshrrev_b32 {vTMP}, 3, {vL}", f"s_lshl_b32 {sT0}, {sW}, 3", f"v_add_u32 {vTMP2}, {sT0}, {vTMP}",
          f"v_mul_u32_u24 v{vW}, 3072, {vTMP2}", f"v_and_b32 {vTMP}, 2, {vTMP}", f"s_and_b32 {sT0}, {sW}, 1",
          f"s_lshl_b32 {sT0}, {sT0}, 2", f"v_or_b32 {vTMP}, {sT0}, {vTMP}", f"v_and_b32 {vTMP2}, 7, {vL}",
          f"v_xor_b32 {vTMP}, {vTMP}, {vTMP2}", f"v_lshl_add_u32 v{vW}, {vTMP}, 4, v{vW}", f"s_lshl_b32 {sT0}, {sR}, 7",
          f"v_add_u32 v{vW}, {sT0}, v{vW}",
          f"s_mul_i32 {sM0}, {sW}, 3072", f"s_add_u32 {sM0}, {sM0}, {RING}", f"s_mov_b32 {sWO}, 0")
        for q in range(4):
            p(f"v_add_u32 {vTMP}, {4 * q}, {vG}", f"v_xor_b32 {vTMP2}, {vTMP}, {vT}", f"v_lshlrev_b32 v{vXD + q}, 10, {vG}",
              f"v_lshl_add_u32 v{vXD + q}, {vTMP2}, 4, v{vXD + q}", f"s_lshl_b32 {sT0}, {sW}, 8",
              f"s_add_u32 {sT0}, {sT0}, {3072 * q}", f"v_add_u32 v{vXD + q}, {sT0}, v{vXD + q}")
        p(f"s_lshl_b32 {sM1}, {sW}, 12", f"s_lshl_b32 {sROW}, {sG}, 18", f"s_sub_u32 {sROW}, {sROW}, 16384",
          f"s_and_b32 {sROW}, {sROW}, 0x1fffff")

        def wstage(s):
            o = [f"s_add_u32 m0, {sM0}, {(s % NS) * 12288}", "s_nop 0"]
            o += [(f"buffer_load_dwordx4 v{vW}, {WSRD}, {sWO} offen offset:{q * 1024} lds", f"w{s}") for q in range(3)]
            o += [f"s_add_u32 {sWO}, {sWO}, {32 * 3072}"]
            return o

        def xdma(par):
            o = [f"s_add_u32 m0, {sM1}, {par * XBUF}", f"s_lshr_b32 {sST}, {sROW}, 4"]
            o += [(f"buffer_load_dwordx4 v{vXD + q}, {XS}, {sROW} offen offset:{1024 * q} sc1 lds", "dma") for q in range(4)]
            return o

        def sdma(par):
            return [f"s_add_u32 m0, {sEVT}, {par * XBUF}", f"s_add_u32 {sROW}, {sROW}, 16384",
                    (f"buffer_load_dword v{vD4}, {SS}, {sST} offen sc1 lds", "dma"), f"s_and_b32 {sROW}, {sROW}, 0x1fffff"]
        p(xdma(0), wstage(0), self.announce_end(), f"s_mov_b32 {sINB}, {sST}", f"s_add_u32 {sROW}, {sROW}, 16384",
          f"s_and_b32 {sROW}, {sROW}, 0x1fffff", xdma(1), wstage(1), wstage(2))
        p(f"v_lshrrev_b32 {vTMP}, 2, {vT}", f"v_mul_u32_u24 v{vRT}, 3072, {vG}", f"v_lshl_add_u32 v{vRT}, {vTMP}, 7, v{vRT}",
          f"v_lshrrev_b32 {vTMP}, 1, {vTMP}", f"v_and_b32 {vTMP2}, 1, {vG}", f"v_lshl_add_u32 {vTMP}, {vTMP2}, 1, {vTMP}",
          f"v_xor_b32 {vTMP}, {sW}, {vTMP}", f"v_lshl_add_u32 v{vRT}, {vTMP}, 5, v{vRT}", f"v_and_b32 {vTMP}, 3, {vL}",
          f"v_lshl_add_u32 v{vRT}, {vTMP}, 3, v{vRT}", f"v_add_u32 v{vRT}, {RING}, v{vRT}")
        for q in range(4):
            p(f"v_add_u32 {vTMP}, {4 * q}, {vG}", f"v_xor_b32 {vTMP}, {vTMP}, {vT}", f"v_lshlrev_b32 v{vXA + q}, 8, {vT}",
              f"v_lshl_add_u32 v{vXA + q}, {vTMP}, 4, v{vXA + q}")
        p(f"s_lshl_b32 {sT0}, {sW}, 8", f"v_lshl_add_u32 v{vD4}, {vL}, 2, {sT0}", f"s_add_u32 {sEVT}, {sT0}, 16384",
          f"v_lshlrev_b32 v{vSA}, 8, {vG}", f"v_lshl_add_u32 v{vSA}, {vT}, 2, v{vSA}", f"v_add_u32 v{vSA}, 16384, v{vSA}",
          f"v_add_u32 v{vSA + 1}, {XBUF}, v{vSA}",
          f"s_lshl_b32 {sC}, {sR}, 2", f"s_add_u32 {sC}, {sC}, {sW}", f"s_lshl_b32 {sT0}, {sC}, 9",
          f"v_lshrrev_b32 {vTMP}, 1, {vG}", f"v_lshlrev_b32 v{vOAK}, 8, {vTMP}", f"v_lshl_add_u32 v{vOAK}, {vT}, 4, v{vOAK}",
          f"v_and_b32 {vTMP}, 1, {vG}", f"v_lshl_add_u32 v{vOAK}, {vTMP}, 3, v{vOAK}", f"v_add_u32 v{vOAK}, {sT0}, v{vOAK}",
          f"v_mov_b32 v{vOA}, v{vOAK}",
          f"s_lshl_b32 {sT0}, {sW}, 7", f"s_add_u32 {sT0}, {sT0}, {SCR}", f"v_lshl_add_u32 v{vMW}, {vT}, 3, {sT0}",
          f"v_lshl_add_u32 v{vMR}, {vG}, 5, {sT0}",
          f"v_and_b32 {vPA}, 31, {vL}", f"v_lshlrev_b32 {vPA}, 2, {vPA}", f"v_add_u32 {vPA}, {F_DN}, {vPA}",
          f"s_lshl_b32 {sT0}, {sC}, 2", self.lane0_addr(vFA, sT0),
          f"s_mul_i32 {sOUT}, {sG}, {O_GS:#x}", f"s_add_u32 {sOUT}, {sOUT}, {O_BASE:#x}", f"s_mov_b32 {sNEED}, 3",
          f"s_mov_b32 {sPF}, {sFB}",
          f"s_mul_i32 {sT0}, {sG}, {S0_GS:#x}", f"s_add_u32 {sT0}, {sT0}, {S0_BASE:#x}",
          f"s_add_u32 s16, s{P_WS}, {sT0}", f"s_addc_u32 s17, s{P_WS + 1}, 0", "s_mov_b32 s18, 0x20000", "s_mov_b32 s19, 0x20000")
        p(f"v_mov_b32 {vTMP3}, {f32(-1e30)}")
        for r in range(4):
            p(f"v_lshl_add_u32 {vTMP}, {vG}, 2, {r}", f"v_sub_u32 {vTMP2}, {vT}, {vTMP}",
              f"v_and_b32 v{TP}, 0x80000001, {vTMP2}", f"v_cmp_eq_u32 vcc, 0, v{TP}",
              f"v_cndmask_b32 v{BO + r}, {vTMP3}, {vF}, vcc",
              f"v_sub_u32 {vTMP2}, {vTMP}, {vT}", f"v_subrev_u32 {vTMP2}, 2, {vTMP2}",
              f"v_and_b32 v{TP}, 0x80000001, {vTMP2}", f"v_cmp_eq_u32 vcc, 0, v{TP}",
              f"v_cndmask_b32 v{BN + r}, {vTMP3}, {vF}, vcc")

        def setmask(gval):
            o = [f"s_cmp_eq_u32 {sG}, {gval}", "s_cselect_b64 vcc, -1, 0", f"v_mov_b32 {vTMP3}, {f32(-1e30)}", "s_nop 1"]
            return o + [f"v_cndmask_b32 v{BP + r}, v{BN + r}, {vTMP3}, vcc" for r in range(4)]
        p(setmask(0))

        faddr = lambda par, s: (f"v{vXA + s % 4}", par * XBUF + (s // 4) * 4096)

        def mm(par, k, x):
            a = ACC + 16 * par
            c = lambda d: "0" if k == 0 else d
            w = lambda t: ar(12 * k + 4 * t)
            return [f"v_mfma_f32_16x16x32_bf16 {vr(a)}, {w(0)}, {x}, {c(vr(a))}",
                    f"v_mfma_f32_16x16x32_bf16 {vr(a + 4)}, {w(1)}, {x}, {c(vr(a + 4))}",
                    f"v_mfma_f32_16x16x32_bf16 {vr(a + 8)}, {x}, {w(2)}, {c(vr(a + 8))}"]
        for s in range(16):
            p(W(vm=[f"w{s}"] + (["dma"] if s == 0 else [])), "s_barrier")
            if s + D < 16:
                p(wstage(s + D))
            if s == 6:
                p(self.hs_issue())
            if s == 9:
                p(self.hs_check(), self.poll_issue(sPF))
            if s == 12:
                p(self.poll_check(sPF), f"s_mov_b32 {sT3}, {sST}", f"s_mov_b32 {sST}, {sINB}",
                  f"s_add_u32 m0, {sEVT}, 0", "s_nop 0", (f"buffer_load_dword v{vD4}, {SS}, {sST} offen sc1 lds", "dma"),
                  f"s_mov_b32 {sST}, {sT3}", sdma(1))
            for t in range(3):
                for h in range(2):
                    p(f"ds_read_b64_tr_b16 {ar(12 * s + 4 * t + 2 * h, 2)}, v{vRT} offset:{(s % NS) * 12288 + t * 1024 + h * 512}")
            for par in range(2):
                a, off = faddr(par, s)
                p(f"ds_read_b128 {vr(XR + 4 * par)}, {a} offset:{off}")
            p("s_waitcnt lgkmcnt(0)")
            c = lambda d: "0" if s == 0 else d
            p(mm(0, s, vr(XR)), mm(1, s, vr(XR + 4)),
              f"v_mfma_f32_16x16x32_bf16 {vr(CSQ)}, {ar(12 * s)}, {vr(ONES)}, {c(vr(CSQ))}",
              f"v_mfma_f32_16x16x32_bf16 {vr(CSK)}, {ar(12 * s + 4)}, {vr(ONES)}, {c(vr(CSK))}",
              f"v_mfma_f32_16x16x32_bf16 {vr(CSV)}, {vr(ONES)}, {ar(12 * s + 8)}, {c(vr(CSV))}")
        p(self.stamp())

        def stats(par):
            a, b, c, d = TP + 16, TP + 17, TP + 18, TP + 19
            S, R, C = SV + 4 * par, SV + 4 * par + 1, SV + 4 * par + 2
            m = MR + 8 * par
            return [(f"ds_read2_b32 v[{a}:{b}], v{vSA + par} offset0:0 offset1:32", "st0"),
                    (f"ds_read2_b32 v[{c}:{d}], v{vSA + par} offset0:16 offset1:48", "st"), W(lgkm=["st"]),
                    f"v_add_f32 v{a}, v{a}, v{b}", f"v_add_f32 v{c}, v{c}, v{d}", f"v_permlane16_swap_b32 v{a}, v{c}",
                    f"v_add_f32 v{a}, v{a}, v{c}", f"v_mov_b32 v{b}, v{a}", f"v_permlane32_swap_b32 v{a}, v{b}",
                    f"v_add_f32 v{S}, v{a}, v{b}", f"v_add_f32 v{b}, v{a}, v{b}", f"v_permlane16_swap_b32 v{S}, v{b}",
                    f"v_mul_f32 v{a}, {f32(1 / 512)}, v{S}", f"v_mul_f32 v{b}, {f32(1 / 512)}, v{b}",
                    f"v_fma_f32 v{b}, -v{a}, v{a}, v{b}", f"v_max_f32 v{b}, 0, v{b}", f"v_add_f32 v{b}, {f32(1e-5)}, v{b}",
                    f"v_rsq_f32 v{R}, v{b}", f"v_mul_f32 v{C}, {f32(CSC)}, v{R}",
                    (f"ds_write_b64 v{vMW}, v[{S}:{R}]", "mw"),
                    (f"ds_read_b128 {vr(m)}, v{vMR}", "mr0"), (f"ds_read_b128 {vr(m + 4)}, v{vMR} offset:16", "mr")]

        def epi_k(par):
            a, S, R = ACC + 16 * par + 4, SV + 4 * par, SV + 4 * par + 1
            o = [f"v_fma_f32 v{TP + 4 + r}, v{S}, v{CSK + r}, v{a + r}" for r in range(4)]
            o += [f"v_mul_f32 v{TP + 4 + r}, v{TP + 4 + r}, v{R}" for r in range(4)]
            o += [f"v_cvt_pk_bf16_f32 v{KB + 2 * par + i}, v{TP + 4 + 2 * i}, v{TP + 5 + 2 * i}" for i in range(2)]
            return o

        def epi_v(par):
            a, m = ACC + 16 * par + 8, MR + 8 * par
            o = [f"v_fma_f32 v{TP + 8 + r}, v{m + 2 * r}, v{CSV}, v{a + r}" for r in range(4)]
            o += [f"v_mul_f32 v{TP + 8 + r}, v{TP + 8 + r}, v{m + 2 * r + 1}" for r in range(4)]
            o += [f"v_cvt_pk_bf16_f32 v{VB + 2 * par + i}, v{TP + 8 + 2 * i}, v{TP + 9 + 2 * i}" for i in range(2)]
            return o

        def epilogue(par, sc):
            a, S, C = ACC + 16 * par, SV + 4 * par, SV + 4 * par + 2
            mx, t2 = TP + 12, TP + 13
            o = [f"v_fma_f32 v{TP + r}, v{S}, v{CSQ + r}, v{a + r}" for r in range(4)]
            o += [f"v_cvt_pk_bf16_f32 v{QB + i}, v{TP + 2 * i}, v{TP + 2 * i + 1}" for i in range(2)]
            ek = epi_k(par)
            o += ek[:2]
            o += [f"v_mfma_f32_16x16x16_bf16 {vr(SP)}, {vr(KB + 2 * (1 - par), 2)}, {vr(QB, 2)}, {vr(BP)}"]
            o += ek[2:]
            ev = [W(lgkm=["mr"], prior=["mr"])] + epi_v(par)
            o += ev[:3]
            o += [f"v_mfma_f32_16x16x16_bf16 {vr(SO_)}, {vr(KB + 2 * par, 2)}, {vr(QB, 2)}, {vr(BO)}"]
            o += ev[3:]
            o += [f"v_max3_f32 v{mx}, v{SP}, v{SP + 1}, v{SP + 2}", f"v_max3_f32 v{mx}, v{SP + 3}, v{SO_}, v{mx}",
                  f"v_max3_f32 v{mx}, v{SO_ + 1}, v{SO_ + 2}, v{mx}", f"v_max_f32 v{t2}, v{SO_ + 3}, v{mx}",
                  f"v_max_f32 v{mx}, v{SO_ + 3}, v{mx}", f"v_permlane16_swap_b32 v{mx}, v{t2}",
                  f"v_max_f32 v{TP + 14}, v{mx}, v{t2}", f"v_max_f32 v{mx}, v{mx}, v{t2}",
                  f"v_permlane32_swap_b32 v{mx}, v{TP + 14}", f"v_max_f32 v{mx}, v{mx}, v{TP + 14}",
                  f"v_mul_f32 v{mx}, v{mx}, v{C}"]
            for i in range(8):
                o.append(f"v_fma_f32 v{SP + i}, v{SP + i}, v{C}, -v{mx}")
            for i in range(8):
                o.append(f"v_exp_f32 v{SP + i}, v{SP + i}")
            o += [f"v_cvt_pk_bf16_f32 v{PB_ + 2 * (1 - par) + i}, v{SP + 2 * i}, v{SP + 2 * i + 1}" for i in range(2)]
            o += [f"v_cvt_pk_bf16_f32 v{PB_ + 2 * par + i}, v{SO_ + 2 * i}, v{SO_ + 2 * i + 1}" for i in range(2)]
            o += [f"v_add_u32 {vF}, 1, {vF}",
                  f"v_mfma_f32_16x16x32_bf16 {vr(LL)}, {vr(ONES)}, {vr(PB_)}, 0",
                  f"v_mfma_f32_16x16x32_bf16 {vr(OO)}, {vr(VB)}, {vr(PB_)}, 0",
                  f"v_rcp_f32 v{LL}, v{LL}"]
            o += [f"v_mul_f32 v{OO + r}, v{OO + r}, v{LL}" for r in range(4)]
            o += [f"v_cvt_pk_bf16_f32 v{OO + i}, v{OO + 2 * i}, v{OO + 2 * i + 1}" for i in range(2)]
            o += [(f"buffer_store_dwordx2 {vr(OO, 2)}, v{vOA}, {WS}, {sOUT} offen{sc}", "out")]
            return o + self.adv(sOUT, None, 16384, 16)

        for i in range(9):
            p(f"v_mul_f32 v{CSQ + i}, {f32(-1 / 512)}, v{CSQ + i}")
        p("s_waitcnt vmcnt(0)", "s_barrier", stats(0), "s_waitcnt lgkmcnt(0)", stats(1), epi_k(0), epi_v(0),
          "s_waitcnt lgkmcnt(0)", "s_barrier", xdma(0), sdma(0), f"s_add_u32 {sNEED}, {sNEED}, 1",
          "s_waitcnt vmcnt(0)", "s_barrier",
          self.first_reads(faddr, XR, NX, RA, 0), self.stamp(),
          f"s_mov_b32 {sCNT}, 5", f"s_cmp_lg_u32 {sT2}, 0", "s_cbranch_scc1 L_qkv_slow_loop")

        def gap_of(x):
            t = str(x.text if isinstance(x, I) else x)
            if "permlane" in t or "v_mfma" in t:
                return 1
            if "v_rcp" in t:
                return 2
            return 0

        def body(name, par, sc, mode):
            s = self.seg(name)
            bb = []
            for k in range(16):
                bb += mm(par, k, vr(XR + 4 * (k % NX)))
            fixed, xs, nxt, bg = self.xreads(par, 3, faddr, XR, NX, RA)
            pl = [(0, self.poll_issue(sPF))]
            pl += [(14, x) for x in self.poll_check(sPF)]
            pl += [(14, x) for x in xdma(1 - par) + sdma(1 - par) + [f"s_add_u32 {sNEED}, {sNEED}, 1"]]
            main = [(1, x, gap_of(x)) for x in epilogue(1 - par, sc)]
            stt = stats(par)
            pl += [(26, stt[0]), (26, stt[1])]
            main += [(30, W(lgkm=["st"], local=["st"]))] + [(30, x, gap_of(x)) for x in stt[3:]]
            main += [(47, W(vm=["out"], local=["out"])), (47, self.flag_store(sc))]
            fixed.setdefault(bg, []).append(W(lgkm=["x15", "st"], vm=["dma"], local=["x15", "st", "dma"]))
            fixed[bg].append("s_barrier")
            s(f"s_cmp_eq_u32 {sNEED}, {sCNT}", f"s_cbranch_scc1 L_qkv_{mode}_evt{par}", f"L_qkv_{mode}_back{par}:")
            s(self.stamp())
            s(weave(bb, fixed, [xs + nxt, pl, main], cap=3, name=name))
            return s

        for mode, sc in (("fast", ""), ("slow", " sc1")):
            self.seg("top")(".p2align 4", f"L_qkv_{mode}_loop:")
            b0 = body(f"qkv_{mode}_even", 0, sc, mode)
            b1 = body(f"qkv_{mode}_odd", 1, sc, mode)
            b1(f"s_cmp_lg_u32 {sNEED}, 36", f"s_cbranch_scc1 L_qkv_{mode}_loop")
            dr = self.seg(f"qkv_{mode}_drain")
            dr(setmask(7), epilogue(1, sc), "s_waitcnt vmcnt(0)", self.flag_store(sc), self.stamp(), "s_endpgm")
            c = self.cold
            c(f"L_qkv_{mode}_evt1:", f"s_cmp_eq_u32 {sCNT}, 5", f"s_cbranch_scc0 L_qkv_{mode}_e19",
              [f"v_mov_b32 v{BP + r}, v{BN + r}" for r in range(4)], f"s_mov_b32 {sCNT}, 18", "s_nop 1",
              f"s_branch L_qkv_{mode}_back1",
              f"L_qkv_{mode}_e19:", f"v_mov_b32 v{vOA}, v{vOAK}", f"s_mov_b32 {sCNT}, 34", f"s_branch L_qkv_{mode}_back1")
            c(f"L_qkv_{mode}_evt0:", f"s_cmp_eq_u32 {sCNT}, 18", f"s_cbranch_scc0 L_qkv_{mode}_e18",
              srd(XS, P_WS, 2097152, X2_BASE), srd(SS, P_WS, 0x20000, S2_BASE), f"s_lshl_b32 {sROW}, {sG}, 18",
              f"s_mov_b32 {sCNT}, 20", f"s_branch L_qkv_{mode}_back0",
              f"L_qkv_{mode}_e18:", f"s_cmp_eq_u32 {sCNT}, 20", f"s_cbranch_scc0 L_qkv_{mode}_e32",
              f"v_mov_b32 v{vOA}, {OOB:#x}", f"v_subrev_u32 {vF}, 1, {vF}", f"s_sub_u32 {sOUT}, {sOUT}, 16384",
              f"s_mov_b32 {sCNT}, 21", f"s_branch L_qkv_{mode}_back0",
              f"L_qkv_{mode}_e32:", f"s_add_u32 {sPF}, {sG}, 1", f"s_and_b32 {sPF}, {sPF}, 7", f"s_lshl_b32 {sPF}, {sPF}, 10",
              f"s_add_u32 {sPF}, {sPF}, {F_EXP - F_DN}", f"s_mov_b32 {sCNT}, 0", f"s_branch L_qkv_{mode}_back0")
            self.finish([p, b0, b1, b0, b1, dr])

    def build(self):
        self.entry()
        self.qkv()
        self.wo()
        self.gu()
        self.dn()
        self.cold("L_exit:", "s_endpgm")
        self.layout.append(self.cold)
        for sg in self.layout:
            check_order(sg)
        for t in self.traces:
            resolve_waits(t)
        for t in self.traces:
            fix_hazards(t)
        fix_hazards([self.cold])
        ref = open(f"cdna_kernels/{NAME}.s.ref").read().split("\n") if os.path.exists(
            f"cdna_kernels/{NAME}.s.ref") else []
        hdr = [l for l in ref if l.startswith(";") and "@launch" not in l and "Override" not in l and "grid=ceil" not in l]
        out = "\n".join(hdr) + ("\n" if hdr else "")
        out += "; @launch grid=(256,1,1) block=(256,1,1) lds=163840\n"
        out += f'.amdgcn_target "amdgcn-amd-amdhsa--gfx950"\n.text\n.globl {NAME}_kernel\n.p2align 8\n'
        out += f".type {NAME}_kernel,@function\n{NAME}_kernel:\n"
        out += emit(self.layout)
        out += f""".section .rodata,"a"
.p2align 6
.amdhsa_kernel {NAME}_kernel
  .amdhsa_next_free_vgpr 512
  .amdhsa_next_free_sgpr 96
  .amdhsa_accum_offset 256
  .amdhsa_group_segment_fixed_size 0
  .amdhsa_kernarg_size 80
  .amdhsa_user_sgpr_count 2
  .amdhsa_user_sgpr_kernarg_segment_ptr 1
  .amdhsa_system_sgpr_workgroup_id_x 1
.end_amdhsa_kernel
"""
        return out


if __name__ == "__main__":
    cfg = dict(CFG)
    outp = None
    for a in sys.argv[1:]:
        if "=" in a:
            k, v = a.split("=")
            cfg[k] = eval(v)
        else:
            outp = a
    g = Gen(cfg)
    txt = g.build()
    open(outp or f"cdna_kernels/{NAME}.s", "w").write(txt)
    if cfg.get("verbose"):
        print("\n".join(weave.log))
        print("\n".join(fix_hazards.log))
```

```python
import re

TRANS = ("v_exp_f32", "v_log_f32", "v_rcp_f32", "v_rsq_f32", "v_sqrt_f32")
REG_RE = re.compile(r"^(-|\|)?([vas])(\d+)\|?$|^(-|\|)?([vas])\[(\d+):(\d+)\]\|?$")


def regs_of(tok):
    tok = tok.strip()
    if tok in ("vcc", "m0", "exec", "scc"):
        return {tok}
    m = REG_RE.match(tok)
    if not m:
        return set()
    if m.group(2):
        return {m.group(2) + m.group(3)}
    return {m.group(5) + str(i) for i in range(int(m.group(6)), int(m.group(7)) + 1)}


class I:
    def __init__(self, text, tag=None):
        self.text = text.strip()
        self.tag = tag
        self.pad = 0
        self.wait = None
        self.parse()

    def parse(self):
        t = self.text
        self.label = t.endswith(":")
        self.directive = t.startswith(".") or t.startswith(";")
        self.defs, self.uses = set(), set()
        self.kind = "other"
        self.mn = ""
        if self.label or self.directive or not t:
            return
        parts = t.split(None, 1)
        mn = self.mn = parts[0]
        ops, mods = [], ""
        if len(parts) > 1:
            raw = re.split(r",(?![^\[]*\])", parts[1])
            for i, o in enumerate(raw):
                o = o.strip()
                w = o.split(None, 1)
                ops.append(w[0] if w else "")
                if len(w) > 1:
                    mods += " " + w[1]
        self.ops, self.mods = ops, mods
        R = [regs_of(o) for o in ops]
        allr = set().union(*R) if R else set()
        rest = set().union(*R[1:]) if len(R) > 1 else set()
        if mn.startswith("v_mfma"):
            self.kind = "mfma"
            self.defs = R[0]
            self.ab = R[1] | R[2]
            self.c = R[3]
            self.uses = self.ab | self.c
            self.passes = 8 if "32x32" in mn else 4
        elif mn.startswith("v_"):
            self.kind = "valu"
            if mn.startswith("v_permlane"):
                self.defs, self.uses = allr, allr
            elif mn.startswith(("v_fmac", "v_dot2c")):
                self.defs, self.uses = R[0], allr
            elif mn in ("v_nop",):
                pass
            else:
                self.defs, self.uses = R[0], rest
            if "_dpp" in mn:
                self.uses = self.uses | R[0]
        elif mn.startswith("ds_"):
            self.kind = "ds"
            if mn.startswith("ds_read"):
                self.defs, self.uses = R[0], rest
            else:
                self.uses = allr
        elif mn.startswith(("buffer_", "global_")):
            self.kind = "vmem"
            if " lds" in mods or "_lds_" in mn:
                self.uses = allr | {"m0"}
                self.dma = True
            elif "load" in mn:
                self.defs, self.uses = R[0], rest
            else:
                self.uses = allr
        elif mn.startswith("s_"):
            self.kind = "salu"
            if mn.startswith(("s_load", "s_memtime", "s_memrealtime")):
                self.kind = "smem"
                self.defs, self.uses = R[0], rest
            elif mn.startswith(("s_cmp", "s_waitcnt", "s_barrier", "s_branch", "s_cbranch", "s_nop", "s_sleep",
                                "s_endpgm", "s_setprio", "s_bitcmp")):
                self.uses = allr
            else:
                self.defs, self.uses = R[0], rest

    def states(self):
        if self.label or self.directive:
            return 0
        if self.wait is not None and self.text == "":
            return 0
        if self.mn == "s_nop":
            return int(self.ops[0]) + 1
        return 1

    def cost(self):
        return 2 if self.mn in TRANS or self.kind == "mfma" else 1


def W(vm=None, lgkm=None, local=(), prior=()):
    i = I("")
    i.local, i.prior = tuple(local), tuple(prior)
    norm = lambda l: [(x, 0) if isinstance(x, str) else x for x in (l or [])]
    i.wait = dict(vm=norm(vm), lgkm=norm(lgkm))
    i.kind = "salu"
    i.mn = "s_waitcnt"
    return i


def mk(x):
    if isinstance(x, I):
        return x
    if isinstance(x, tuple):
        return I(x[0], x[1])
    return I(x)


class Seg:
    def __init__(self, name):
        self.name = name
        self.ins = []

    def __call__(self, *xs):
        for x in xs:
            if isinstance(x, list):
                self(*x)
            elif isinstance(x, str) and "\n" in x:
                for l in x.split("\n"):
                    if l.strip():
                        self.ins.append(I(l))
            else:
                self.ins.append(mk(x))
        return self


def weave(backbone, fixed, streams, cap=2, name=""):
    n = len(backbone)
    out = []
    pos = [0] * len(streams)
    last = [-100] * len(streams)
    placed = {}
    for x in fixed.get(0, []):
        out.append(mk(x))
    for k in range(n):
        out.append(mk(backbone[k]))
        fx = [mk(x) for x in fixed.get(k + 1, [])]
        capk = cap[k % len(cap)] if isinstance(cap, (list, tuple)) else cap
        budget = capk - sum(x.cost() for x in fx if not x.label)
        progress = True
        while budget > 0 and progress:
            progress = False
            for si, st in enumerate(streams):
                while pos[si] < len(st):
                    it = st[pos[si]]
                    ins = mk(it[1])
                    gapmin = it[2] if len(it) > 2 else 0
                    if ins.label:
                        out.append(ins)
                        pos[si] += 1
                        continue
                    if it[0] > k or last[si] + gapmin > k or budget <= 0:
                        break
                    if ins.cost() > budget and budget < capk:
                        break
                    out.append(ins)
                    placed[(si, pos[si])] = k
                    budget -= ins.cost()
                    last[si] = k
                    pos[si] += 1
                    progress = True
        out.extend(fx)
    over = 0
    for si, st in enumerate(streams):
        while pos[si] < len(st):
            out.append(mk(st[pos[si]][1]))
            over += 1
            pos[si] += 1
    ends = [max([g for (s, _), g in placed.items() if s == si], default=-1) for si in range(len(streams))]
    marks = {}
    k = -1
    bb = set(id(x) for x in [])
    cnt = 0
    for x in out:
        if x.kind == "mfma" and cnt < n and x.text == mk(backbone[cnt]).text:
            cnt += 1
        elif x.tag and not x.tag.startswith("x"):
            marks.setdefault(x.tag, []).append(cnt - 1)
    slots = sum(x.cost() for x in out if not x.label) - 2 * n
    weave.log.append(f"{name}: {n} mfma, {slots} slots, ends {ends}, overflow {over}, " +
                     " ".join(f"{t}@{v[0]}-{v[-1]}" for t, v in marks.items()))
    return out


weave.log = []


def check_order(seg):
    for n, ins in enumerate(seg.ins):
        if ins.wait is None:
            continue
        before = [x.tag for x in seg.ins[:n]]
        after = [x.tag for x in seg.ins[n:]]
        for t in ins.local:
            assert t in before and t not in after, f"{seg.name}: wait on local tag {t} is misplaced"
        for t in ins.prior:
            assert t not in before, f"{seg.name}: wait on prior tag {t} comes after a new op"


def resolve_waits(trace):
    best = {}
    ops = {"vm": [], "lgkm": []}
    done = {"vm": 0, "lgkm": 0}
    for seg in trace:
        for ins in seg.ins:
            if ins.wait is not None:
                b = best.setdefault(id(ins), {"ins": ins, "vm": None, "lgkm": None})
                for cls in ("vm", "lgkm"):
                    for tag, age in ins.wait[cls]:
                        idx = [i for i, t in enumerate(ops[cls]) if t == tag]
                        if len(idx) <= age:
                            continue
                        p = idx[-1 - age]
                        if p < done[cls]:
                            continue
                        cnt = len(ops[cls]) - 1 - p
                        b[cls] = cnt if b[cls] is None else min(b[cls], cnt)
                continue
            if ins.kind == "vmem":
                ops["vm"].append(ins.tag)
            elif ins.kind == "ds":
                ops["lgkm"].append(ins.tag)
            elif ins.mn == "s_waitcnt":
                for cls, pat in (("vm", r"vmcnt\((\d+)\)"), ("lgkm", r"lgkmcnt\((\d+)\)")):
                    m = re.search(pat, ins.text)
                    if m:
                        done[cls] = max(done[cls], len(ops[cls]) - int(m.group(1)))
    for b in best.values():
        ins = b["ins"]
        prev = getattr(ins, "resolved", {"vm": None, "lgkm": None})
        for cls in ("vm", "lgkm"):
            if prev[cls] is not None:
                b[cls] = prev[cls] if b[cls] is None else min(b[cls], prev[cls])
        ins.resolved = {"vm": b["vm"], "lgkm": b["lgkm"]}
        parts = []
        if b["vm"] is not None:
            parts.append(f"vmcnt({min(b['vm'], 63)})")
        if b["lgkm"] is not None:
            parts.append(f"lgkmcnt({min(b['lgkm'], 15)})")
        ins.text = ("s_waitcnt " + " ".join(parts)) if parts else ""


def need_states(p, c):
    n = 0
    vg = lambda s: {r for r in s if r[0] in "va" and r != "vcc"}
    sg = lambda s: {r for r in s if r[0] == "s" or r == "vcc"}
    if p.kind == "valu":
        pv, ps = vg(p.defs), sg(p.defs)
        if c.kind == "mfma" and pv & c.uses:
            n = max(n, 2)
        if c.kind == "valu":
            if pv & c.uses:
                if c.mn.startswith("v_permlane") or "_dpp" in c.mn:
                    n = max(n, 2)
                if c.mn.startswith(("v_readfirstlane", "v_readlane")):
                    n = max(n, 1)
                if p.mn in TRANS:
                    n = max(n, 1)
                if p.mn.startswith("v_dot2") and c.mn != p.mn:
                    n = max(n, 3)
            if p.mn.startswith("v_dot2") and pv & c.defs and c.mn != p.mn:
                n = max(n, 3)
            if ps & c.uses:
                n = max(n, 2)
        if c.kind in ("vmem", "ds") and p.mn.startswith("v_dot2") and pv & c.uses:
            n = max(n, 3)
        if c.kind == "vmem" and ps & c.uses:
            n = max(n, 5)
    if p.kind == "mfma":
        big = p.passes == 8
        if c.kind == "mfma":
            if p.defs & c.ab:
                n = max(n, 12 if big else 8)
            if p.defs & c.c and (p.defs != c.c or p.passes != c.passes):
                n = max(n, 10 if big else 6)
        elif c.kind in ("valu", "ds", "vmem"):
            if p.defs & (c.uses | c.defs):
                n = max(n, 12 if big else 8)
            if p.c & c.defs:
                n = max(n, 7 if big else 3)
    if p.kind == "salu" and "m0" in p.defs and c.kind == "vmem" and "m0" in c.uses:
        n = max(n, 1)
    if p.kind == "vmem" and p.mn in ("buffer_store_dwordx4", "buffer_store_dwordx3", "global_store_dwordx4"):
        data = regs_of(p.ops[0] if p.mn.startswith("buffer") else p.ops[1])
        if data & c.defs:
            n = max(n, 2)
    return n


def fix_hazards(trace):
    total = 0
    while True:
        changed = False
        win = []
        for seg in trace:
            for ins in seg.ins:
                if ins.states() == 0:
                    continue
                dist = ins.pad
                for p in reversed(win):
                    if dist >= 12:
                        break
                    nd = need_states(p, ins)
                    if nd > dist:
                        ins.pad += nd - dist
                        total += nd - dist
                        fix_hazards.log.append(f"{seg.name}: +{nd - dist} before '{ins.text}' after '{p.text}'")
                        dist = nd
                        changed = True
                    dist += p.states() + p.pad
                win.append(ins)
                if len(win) > 16:
                    win.pop(0)
        if not changed:
            return total


fix_hazards.log = []


def emit(segs):
    out = []
    for seg in segs:
        out.append(f"; ---- {seg.name}")
        for ins in seg.ins:
            p = ins.pad
            while p > 0:
                out.append(f"    s_nop {min(p, 16) - 1}")
                p -= 16
            if ins.text:
                out.append(ins.text if ins.label or ins.directive else "    " + ins.text)
    return "\n".join(out) + "\n"
```

```python
import sys, os, math, struct
sys.path.insert(0, os.path.dirname(os.path.abspath(__file__)))
from asmlib import *

NAME = "interleave_layers__sliding_local_dilated__glu_gated_reglu__prompt"

CFG = dict(alias=True, stamps=False, force_slow=False, wnt=False, touch=True, late_alarm=False, sleep=1)

WS_BYTES = 268435456
O_BASE, O_GS = 0x0100000, 0x80000
X1_BASE, X1_GS = 0x0800000, 0x100000
H_BASE, H_GS = 0x1000000, 0x200000
X2_BASE = 0x2000000
S2_BASE = 0x2200000
S0_BASE, S0_GS = 0x2300000, 0x20000
ST_BASE = 0x3000000
F_QKV, F_WO, F_GU, F_DN, F_EXP, F_ALARM, F_SLOW = 0, 128, 256, 512, 640, 896, 1024
OOB = 0x80000000
XBUF = 17408
REG = 4352

sG, sR, sW, sPAT, sTO = "s3", "s33", "s34", "s35", "s56"
WS, WSRD, XS, SS, DBG = "s[4:7]", "s[8:11]", "s[12:15]", "s[16:19]", "s[20:23]"
P_X, P_QKV, P_WO, P_G, P_U, P_D, P_OUT, P_DBG, P_WS = 36, 38, 40, 44, 46, 48, 50, 52, 54
sC, sNEED, sIN, sOUT, sCNT, sM0, sT0, sT1, sFB, sROW, sST, sEVT, sPF, sWO = (f"s{i}" for i in range(57, 71))
sSTAMP = "s72"
sK80 = "s73"
sT2, sT3 = "s74", "s75"
sINB, sOUTB = "s76", "s77"
sM1 = "s78"
sFB0 = "s79"

vL, vT, vG, vL16, vP, vPA, vFA, vF, vTMP, vTMP2, vSTA, vTMP3 = (f"v{i}" for i in range(0, 12))
ONES = 12
vTA, vTS, vDUM = "v250", "v251", "v252"


def f32(x):
    return "0x%08x" % struct.unpack("<I", struct.pack("<f", x))[0]


def vr(b, n=4):
    return f"v[{b}:{b + n - 1}]"


def ar(b, n=4):
    return f"a[{b}:{b + n - 1}]"


def srd(dst, ptr, size, add=0):
    b = int(dst[2:dst.index(":")])
    o = []
    if add:
        o += [f"s_add_u32 s{b}, s{ptr}, {add}", f"s_addc_u32 s{b + 1}, s{ptr + 1}, 0"]
    else:
        o += [f"s_mov_b32 s{b}, s{ptr}", f"s_mov_b32 s{b + 1}, s{ptr + 1}"]
    o += [f"s_mov_b32 s{b + 2}, {size}", f"s_mov_b32 s{b + 3}, 0x20000"]
    return o


class Gen:
    def __init__(self, cfg):
        self.cfg = cfg
        self.layout = []
        self.cold = Seg("cold")
        self.traces = []
        self.uid = 0

    def seg(self, name):
        s = Seg(name)
        self.layout.append(s)
        return s

    def lab(self, p):
        self.uid += 1
        return f"L_{p}_{self.uid}"

    def stamp(self):
        return self.stamp_a() + (["s_waitcnt lgkmcnt(0)"] if self.cfg["stamps"] else []) + self.stamp_b()

    def stamp_a(self):
        return ["s_memrealtime s[80:81]"] if self.cfg["stamps"] else []

    def stamp_b(self):
        if not self.cfg["stamps"]:
            return []
        return [f"v_mov_b32 {vTMP3}, s80", f"buffer_store_dword {vTMP3}, {vSTA}, {WS}, {sSTAMP} offen",
                f"s_add_u32 {sSTAMP}, {sSTAMP}, 4"]

    def stamp_at(self, fixed, bg):
        if self.cfg["stamps"]:
            fixed.setdefault(bg - 8, []).extend(self.stamp_a())
            fixed.setdefault(bg, []).append("s_waitcnt lgkmcnt(0)")
            fixed.setdefault(bg + 1, []).extend(self.stamp_b())

    def poll_issue(self, soff):
        return (f"buffer_load_dword {vP}, {vPA}, {WS}, {soff} offen sc1", "poll")

    def poll_check(self, soff, key, mode, publish=False):
        sp, ret = f"L_spin_{key}_{mode}", f"L_ret_{key}_{mode}"
        sc = " sc1" if mode == "slow" else ""
        c = self.cold
        c(f"{sp}:")
        if publish:
            c(f"v_add_u32 {vTMP}, 1, {vF}", "s_waitcnt vmcnt(0)", f"buffer_store_dword {vTMP}, {vFA}, {WS}, {sFB} offen{sc}")
        c(f"{sp}_l:", f"s_sub_u32 {sTO}, {sTO}, 1", "s_cbranch_scc1 L_exit")
        if self.cfg["sleep"]:
            c(f"s_sleep {self.cfg['sleep']}")
        c(f"buffer_load_dword {vP}, {vPA}, {WS}, {soff} offen sc1", "s_waitcnt vmcnt(0)",
          f"v_cmp_gt_i32 vcc, {sNEED}, {vP}", f"s_cbranch_vccz {ret}")
        if mode != "slow":
            c(f"s_and_b32 {sT0}, {sTO}, 15", f"s_cbranch_scc1 {sp}_l", f"v_mov_b32 {vTMP}, {F_ALARM}",
              f"buffer_load_dword {vP}, {vTMP}, {WS}, {sFB} offen sc1", "s_waitcnt vmcnt(0)",
              f"v_cmp_ne_u32 vcc, 0, {vP}", f"s_cbranch_vccnz {sp}_l",
              "buffer_wbl2 sc1", "s_waitcnt vmcnt(0)", self.go_slow(),
              f"buffer_store_dword {vF}, {vFA}, {WS}, {sFB} offen sc1")
        c(f"s_branch L_spin_{key}_slow" if mode == "fast" else f"s_branch {sp}_l")
        return [W(vm=["poll"]), f"v_cmp_gt_i32 vcc, {sNEED}, {vP}", f"s_cbranch_vccnz {sp}", f"{ret}:"]

    def go_slow(self):
        return [f"s_add_u32 {sFB}, {sFB0}, {F_SLOW}", f"s_mov_b32 {sPF}, {sFB}", f"s_mov_b32 {sT2}, 1"]

    def hs_issue(self, grp=sG):
        return [f"s_lshl_b32 {sT0}, {grp}, 2", f"v_mov_b32 {vTMP}, {sT0}",
                (f"buffer_load_dword {vP}, {vTMP}, {DBG}, 0 offen sc1", "poll")]

    def hs_check(self):
        sp, ret, mm, ok = self.lab("hs"), self.lab("hsret"), self.lab("hsmm"), self.lab("hsok")
        self.cold(f"{sp}:", f"s_sub_u32 {sTO}, {sTO}, 1", "s_cbranch_scc1 L_exit", "s_sleep 1", self.hs_issue(),
                  "s_waitcnt vmcnt(0)", f"v_cmp_eq_u32 vcc, 0, {vP}", f"s_cbranch_vccnz {sp}", f"s_branch {ret}",
                  f"{mm}:")
        if self.cfg["late_alarm"]:
            self.cold(["s_sleep 127"] * 6)
        self.cold(f"s_mov_b32 {sT0}, {F_ALARM}", self.lane0_addr(vTMP, sT0), f"v_mov_b32 {vTMP2}, 0",
                  f"buffer_store_dword {vTMP2}, {vTMP}, {WS}, {sFB0} offen sc1", "s_waitcnt vmcnt(0)", self.go_slow(),
                  f"s_branch {ok}")
        o = [W(vm=["poll"]), f"v_cmp_eq_u32 vcc, 0, {vP}", f"s_cbranch_vccnz {sp}", f"{ret}:",
             f"v_cmp_ne_u32 vcc, {sPAT}, {vP}", f"s_cbranch_vccnz {mm}"]
        if self.cfg["force_slow"] is not False:
            o += [f"s_cmp_eq_u32 {sR}, {int(self.cfg['force_slow'])}", f"s_cbranch_scc1 {mm}"]
        return o + [f"{ok}:"]

    def publish(self, sc, local=True):
        return [W(vm=["out"], local=["out"]) if local else W(vm=["out"], prior=["out"]), f"v_add_u32 {vF}, 1, {vF}",
                (f"buffer_store_dword {vF}, {vFA}, {WS}, {sFB} offen{sc}", "flag")]

    def final_publish(self, sc):
        return [f"v_add_u32 {vF}, 1, {vF}", "s_waitcnt vmcnt(0)", f"buffer_store_dword {vF}, {vFA}, {WS}, {sFB} offen{sc}"]

    def touch(self, stride):
        if not self.cfg["touch"]:
            return []
        return [(f"buffer_load_dword {vDUM}, {vTA}, {WS}, 0 offen sc1", "touch"), f"v_add_u32 {vTA}, {stride}, {vTA}"]

    def keep_lanes(self, reg, n):
        return [f"v_mov_b32 {vTMP2}, {OOB:#x}", f"v_cmp_gt_u32 vcc, {n}, {vL}", f"v_cndmask_b32 {reg}, {vTMP2}, {reg}, vcc"]

    def lane0_addr(self, dst, sreg):
        return [f"v_mov_b32 {dst}, {sreg}", f"v_mov_b32 {vTMP2}, {OOB:#x}", f"v_cmp_eq_u32 vcc, 0, {vL}",
                f"v_cndmask_b32 {dst}, {vTMP2}, {dst}, vcc"]

    def adv(self, s, base, step, nrec):
        if self.cfg["alias"]:
            return [f"s_add_u32 {s}, {s}, {step}", f"s_and_b32 {s}, {s}, {~(step * 16) & 0xffffffff:#x}"]
        return [f"s_add_u32 {s}, {s}, {step}"]

    def entry(self):
        s = self.seg("entry")
        s(f"s_cmp_ge_u32 s2, 256", "s_cbranch_scc1 L_exit",
          "s_load_dwordx16 s[36:51], s[0:1], 0", "s_load_dwordx4 s[52:55], s[0:1], 64",
          f"s_and_b32 {sG}, s2, 7", f"s_lshr_b32 {sR}, s2, 3",
          "v_lshrrev_b32 v1, 6, v0", f"v_and_b32 {vL}, 63, v0", f"v_readfirstlane_b32 {sW}, v1",
          f"s_getreg_b32 {sPAT}, hwreg(HW_REG_XCC_ID)", f"s_and_b32 {sPAT}, {sPAT}, 15", f"s_or_b32 {sPAT}, {sPAT}, 0x80",
          f"s_mov_b32 {sTO}, 200000", f"s_mov_b32 {sT2}, 0", f"v_mov_b32 {vF}, 0",
          f"v_and_b32 {vT}, 15, {vL}", f"v_lshrrev_b32 {vG}, 4, {vL}", f"v_lshlrev_b32 {vL16}, 4, {vL}",
          f"s_lshl_b32 {sFB}, {sG}, 11", f"s_mov_b32 {sFB0}, {sFB}", f"s_mov_b32 {sPF}, {sFB}")
        for i in range(4):
            s(f"v_mov_b32 v{ONES + i}, 0x3f803f80")
        s("s_waitcnt lgkmcnt(0)", srd(WS, P_WS, WS_BYTES), srd(DBG, P_DBG, 256))
        if self.cfg["stamps"]:
            s(f"s_lshl_b32 {sT0}, s2, 2", f"s_add_u32 {sT0}, {sT0}, {sW}", f"s_lshl_b32 {sT0}, {sT0}, 8",
              f"s_add_u32 {sSTAMP}, {sT0}, {ST_BASE:#x}", f"s_mov_b32 {sT0}, 0", self.lane0_addr(vSTA, sT0), self.stamp())
        s(f"s_cmp_lt_u32 {sR}, 8", "s_cbranch_scc1 L_qkv", f"s_cmp_lt_u32 {sR}, 10", "s_cbranch_scc1 L_wo",
          f"s_cmp_lt_u32 {sR}, 24", "s_cbranch_scc1 L_gu", "s_branch L_dn")
        self.entry_seg = s
        self.wnt = " nt" if self.cfg["wnt"] else ""

    def xreads(self, par, nt, faddr, XR, NX, RA, nk=16, pair=1):
        fixed, st = {}, []

        def rd(p, s):
            a, off = faddr(p, s)
            r = XR + 4 * (s % NX)
            return (f"ds_read_b128 {vr(r)}, {a} offset:{off}", f"x{s}")
        bk = nk - RA
        for s in range(RA, nk):
            k = min(s - RA, bk - 2)
            st.append((nt * k, rd(par, s)))
        for s in range(0, bk, pair):
            e = min(s + pair - 1, nk - 1)
            t = f"x{e}"
            fixed.setdefault(nt * s, []).append(W(lgkm=[t], prior=[t]) if e < RA else W(lgkm=[t], local=[t]))
        nxt = [(nt * (bk + s), rd(1 - par, s)) for s in range(RA)]
        return fixed, st, nxt, nt * bk

    def first_reads(self, faddr, XR, NX, RA, par):
        o = []
        for s in range(RA):
            a, off = faddr(par, s)
            o.append((f"ds_read_b128 {vr(XR + 4 * (s % NX))}, {a} offset:{off}", f"x{s}"))
        return o

    def finish(self, trace):
        self.traces.append([self.entry_seg] + trace)

    def gu(self):
        vW, vRG, vRC, vD4, vD16, vSA, vS, vOA = 16, 20, 21, 22, 23, 24, 26, 28
        CS, ACC, XR, TP, HB = 32, 48, 80, 112, 128
        NX, RA, D, NS, RING = 8, 4, 3, 4, 40960
        p = self.seg("gu_pro")
        p("L_gu:", f"s_sub_u32 {sC}, {sR}, 10")
        p(f"s_cmp_lt_u32 {sW}, 2", f"s_cselect_b32 s8, s{P_G}, s{P_U}", f"s_cselect_b32 s9, s{P_G + 1}, s{P_U + 1}",
          f"s_mov_b32 s10, {512 * 3584}", "s_mov_b32 s11, 0x20000")
        p(f"v_lshrrev_b32 {vTMP}, 3, {vL}", f"v_mul_u32_u24 v{vW}, 3584, {vTMP}",
          f"v_lshlrev_b32 {vTMP}, 1, {vTMP}", f"v_and_b32 {vTMP}, 4, {vTMP}", f"v_and_b32 {vTMP2}, 7, {vL}",
          f"v_xor_b32 {vTMP}, {vTMP}, {vTMP2}", f"v_lshl_add_u32 v{vW}, {vTMP}, 4, v{vW}",
          f"s_and_b32 {sT0}, {sW}, 1", f"s_lshl_b32 {sT0}, {sT0}, 7", f"s_lshl_b32 {sT1}, {sC}, 8",
          f"s_add_u32 {sT0}, {sT0}, {sT1}", f"v_add_u32 v{vW}, {sT0}, v{vW}")
        for q in range(1, 4):
            p(f"v_add_u32 v{vW + q}, {q * (8 * 3584 - 1024)}, v{vW}")
        p(f"s_lshl_b32 {sM0}, {sW}, 12", f"s_add_u32 {sM0}, {sM0}, {RING}", f"s_mov_b32 {sWO}, 0")

        def wstage(s):
            o = [f"s_add_u32 m0, {sM0}, {(s % NS) * 16384}", "s_nop 0"]
            o += [(f"buffer_load_dwordx4 v{vW + q}, {WSRD}, {sWO} offen offset:{q * 1024}{self.wnt} lds", f"w{s}") for q in range(4)]
            o += [f"s_add_u32 {sWO}, {sWO}, {32 * 3584}"]
            return o
        p([wstage(s) for s in range(D)])
        p(f"v_lshrrev_b32 {vTMP}, 2, {vT}", f"v_lshl_add_u32 v{vRG}, {vG}, 3, {vTMP}", f"v_lshlrev_b32 v{vRG}, 7, v{vRG}",
          f"v_lshrrev_b32 {vTMP}, 1, {vTMP}", f"s_and_b32 {sT0}, {sW}, 1", f"v_xor_b32 {vTMP}, {sT0}, {vTMP}",
          f"v_lshl_add_u32 v{vRG}, {vTMP}, 6, v{vRG}", f"v_and_b32 {vTMP}, 3, {vL}",
          f"v_lshl_add_u32 v{vRG}, {vTMP}, 4, v{vRG}", f"s_lshr_b32 {sT0}, {sW}, 1", f"s_lshl_b32 {sT0}, {sT0}, 12",
          f"s_add_u32 {sT0}, {sT0}, {RING}", f"v_add_u32 v{vRG}, {sT0}, v{vRG}")
        p(f"s_mul_i32 {sT0}, {sW}, {REG}", f"v_lshl_add_u32 v{vD4}, {vL}, 2, {sT0}", f"v_add_u32 v{vD16}, {sT0}, {vL16}",
          f"s_mov_b32 {sM1}, {sT0}",
          f"v_mul_u32_u24 v{vSA}, {REG}, {vG}", f"v_lshl_add_u32 v{vSA}, {vT}, 2, v{vSA}", f"v_add_u32 v{vSA + 1}, {XBUF}, v{vSA}",
          f"v_min_u32 {vPA}, 7, {vL}", f"v_lshlrev_b32 {vPA}, 2, {vPA}", f"v_add_u32 {vPA}, {F_WO}, {vPA}",
          f"s_lshl_b32 {sT0}, {sC}, 2", f"s_add_u32 {sT0}, {sT0}, {sW}", f"s_lshl_b32 {sT1}, {sT0}, 10",
          f"v_add_u32 v{vOA}, {sT1}, {vL16}", f"s_lshl_b32 {sT0}, {sT0}, 2", f"s_add_u32 {sT0}, {sT0}, {F_GU}",
          self.lane0_addr(vFA, sT0),
          f"s_mul_i32 {sIN}, {sG}, {X1_GS:#x}", f"s_add_u32 {sIN}, {sIN}, {X1_BASE:#x}",
          f"s_mul_i32 {sOUT}, {sG}, {H_GS:#x}", f"s_add_u32 {sOUT}, {sOUT}, {H_BASE:#x}", f"s_mov_b32 {sNEED}, 1")
        p(f"s_lshl_b32 {sT0}, {sC}, 2", f"s_add_u32 {sT0}, {sT0}, {sW}", f"s_mul_i32 {sT3}, {sT0}, 3", f"s_sub_u32 {sT3}, {sT3}, 8",
          f"v_add_u32 {vTMP}, {sT3}, {vL}", f"s_lshl_b32 {sT3}, {sG}, 18", f"s_add_u32 {sT3}, {sT3}, {X2_BASE:#x}",
          f"v_lshl_add_u32 {vTA}, {vTMP}, 7, {sT3}", f"v_mov_b32 {vTS}, 16384",
          f"s_lshl_b32 {sT3}, {sG}, 14", f"s_add_u32 {sT3}, {sT3}, {S2_BASE - 16384:#x}",
          f"v_lshl_add_u32 {vTMP3}, {vTMP}, 7, {sT3}", f"v_mov_b32 {vTMP2}, 1024", f"v_cmp_lt_u32 vcc, 127, {vTMP}",
          f"v_cndmask_b32 {vTA}, {vTA}, {vTMP3}, vcc", f"v_cndmask_b32 {vTS}, {vTS}, {vTMP2}, vcc",
          f"v_mov_b32 {vTMP2}, {OOB:#x}", f"v_cmp_lt_u32 vcc, 135, {vTMP}", f"v_cndmask_b32 {vTA}, {vTA}, {vTMP2}, vcc",
          f"s_lshl_b32 {sT0}, {sT0}, 10", f"s_add_u32 {sT0}, {sT0}, {sOUT}", f"v_lshl_add_u32 {vTMP3}, {vL}, 7, {sT0}",
          f"v_mov_b32 {vTMP2}, 65536", f"v_cmp_gt_u32 vcc, 8, {vL}",
          f"v_cndmask_b32 {vTA}, {vTA}, {vTMP3}, vcc", f"v_cndmask_b32 {vTS}, {vTS}, {vTMP2}, vcc", self.keep_lanes(vTA, 11))
        for s in range(16):
            p(W(vm=[f"w{s}"]), "s_barrier")
            if s + D < 16:
                p(wstage(s + D))
            if s == 13:
                p(self.touch(vTS), self.hs_issue())
            for t in range(4):
                for h in range(2):
                    off = (s % NS) * 16384 + (t // 2) * 8192 + (t % 2) * 8 + h * 512
                    p(f"ds_read_b64_tr_b16 {ar(16 * s + 4 * t + 2 * h, 2)}, v{vRG} offset:{off}")
            p("s_waitcnt lgkmcnt(0)")
            for t in range(4):
                c = "0" if s == 0 else vr(CS + 4 * t)
                p(f"v_mfma_f32_16x16x32_bf16 {vr(CS + 4 * t)}, {ar(16 * s + 4 * t)}, {vr(ONES)}, {c}")
        p(self.stamp(), self.hs_check())
        for i in range(16):
            p(f"v_mul_f32 v{CS + i}, {f32(-1 / 512)}, v{CS + i}")

        faddr = lambda par, s: (vL16, par * XBUF + (s // 4) * REG + 256 + (s % 4) * 1024)

        def dma(par):
            o = [f"s_add_u32 m0, {sM1}, {par * XBUF}", f"s_add_u32 {sNEED}, {sNEED}, 1",
                 (f"buffer_load_dword v{vD4}, {WS}, {sIN} offen sc1 lds", "dma")]
            o += [(f"buffer_load_dwordx4 v{vD16}, {WS}, {sIN} offen offset:{256 + 1024 * q} sc1 lds", "dma") for q in range(4)]
            return o + self.adv(sIN, None, 32768, 16)
        p(self.poll_issue(sFB), self.poll_check(sFB, "gu", "pro"), dma(0), "s_waitcnt vmcnt(0)", "s_barrier",
          self.first_reads(faddr, XR, NX, RA, 0), self.stamp(),
          f"s_mov_b32 {sCNT}, 15", f"s_cmp_lg_u32 {sT2}, 0", "s_cbranch_scc1 L_gu_slow")

        def epilogue(par, sc):
            a = ACC + 16 * par
            o = []
            for t in range(2):
                for r in range(4):
                    o.append(f"v_fma_f32 v{TP + 4 * t + r}, v{vS + par}, v{CS + 4 * t + r}, v{a + 4 * t + r}")
            for t in range(2):
                for r in range(4):
                    o.append(f"v_fma_f32 v{TP + 8 + 4 * t + r}, v{vS + par}, v{CS + 8 + 4 * t + r}, v{a + 8 + 4 * t + r}")
                    o.append(f"v_max_f32 v{TP + 4 * t + r}, 0, v{TP + 4 * t + r}")
            for i in range(8):
                o.append(f"v_mul_f32 v{TP + i}, v{TP + i}, v{TP + 8 + i}")
            for i in range(4):
                o.append(f"v_cvt_pk_bf16_f32 v{HB + i}, v{TP + 2 * i}, v{TP + 2 * i + 1}")
            o.append((f"buffer_store_dwordx4 {vr(HB)}, v{vOA}, {WS}, {sOUT} offen{sc}", "out"))
            return o

        def stats(par):
            a, b = TP + 16 + 8, TP + 17 + 8
            return [(f"ds_read2_b32 v[{a}:{b}], v{vSA + par} offset0:0 offset1:32", "st"), W(lgkm=["st"]),
                    f"v_add_f32 v{a}, v{a}, v{b}", f"v_mov_b32 v{b}, v{a}", f"v_permlane16_swap_b32 v{a}, v{b}",
                    f"v_add_f32 v{a}, v{a}, v{b}", f"v_mov_b32 v{b}, v{a}", f"v_permlane32_swap_b32 v{a}, v{b}",
                    f"v_add_f32 v{vS + par}, v{a}, v{b}"]

        def body(key, mode, par, epi, pre):
            sc = " sc1" if mode == "slow" else ""
            s = self.seg(f"gu_{key}_{mode}")
            bb = []
            for k in range(16):
                for t in range(4):
                    d = vr(ACC + 16 * par + 4 * t)
                    bb.append(f"v_mfma_f32_16x16x32_bf16 {d}, {ar(16 * k + 4 * t)}, {vr(XR + 4 * (k % NX))}, {'0' if k == 0 else d}")
            fixed, xs, nxt, bg = self.xreads(par, 4, faddr, XR, NX, RA, pair=self.cfg.get("gu_pair", 2))
            main, pl = [], []
            if pre:
                pl.append((0, self.poll_issue(sFB)))
                pl += [(17, x) for x in self.poll_check(sFB, "gu" + key, mode)]
                pl += [(17, x) for x in dma(1 - par)]
            if epi:
                main += [(1, x) for x in epilogue(1 - par, sc)]
                main += [(1, x) for x in self.adv(sOUT, None, 65536, 16)]
            if pre:
                main += [(28, x) for x in self.touch(vTS)]
            stt = stats(par)
            st2 = [(34, stt[0])] + [(39, stt[1])] + [(39, x, 2 if i in (2, 5) else 0) for i, x in enumerate(stt[2:])]
            fl = [(53, x) for x in self.publish(sc)] if epi else []
            dm = ["dma"] if pre else []
            self.stamp_at(fixed, bg)
            fixed.setdefault(bg, []).append(W(lgkm=["x15", "st"], vm=dm, local=["x15", "st"] + dm))
            if pre:
                fixed[bg].append("s_barrier")
                xs = xs + nxt
            s(weave(bb, fixed, [xs, pl, main, fl, st2], name=s.name))
            return s

        for mode, sc in (("fast", ""), ("slow", " sc1")):
            if mode == "slow":
                self.seg("gu_slow_lab")("L_gu_slow:")
            b0 = body("b0", mode, 0, False, True)
            self.seg("top")(".p2align 4", f"L_gu_{mode}_loop:")
            b1 = body("odd", mode, 1, True, True)
            b2 = body("even", mode, 0, True, True)
            b2(f"s_sub_u32 {sCNT}, {sCNT}, 1", f"s_cmp_eq_u32 {sCNT}, 8", f"s_cbranch_scc1 L_gu_{mode}_sw",
               f"s_cmp_lg_u32 {sCNT}, 0", f"s_cbranch_scc1 L_gu_{mode}_loop")
            self.cold(f"L_gu_{mode}_sw:", f"v_mov_b32 {vTA}, {OOB:#x}", f"s_branch L_gu_{mode}_loop")
            b3 = body("last", mode, 1, True, False)
            dr = self.seg(f"gu_{mode}_drain")
            dr(epilogue(1, sc), self.final_publish(sc), self.stamp(), "s_endpgm")
            self.finish([p, b0, b1, b2, b1, b2, b3, dr])

    def wo(self):
        vW, vRP, vD16, vRA, vOA, vSO = 16, 20, 22, 23, 24, 25
        ACC, XR, RS, OB, TP = 48, 80, 112, 120, 128
        NX, RA, D, NS, RING = 8, 4, 3, 4, 40960
        p = self.seg("wo_pro")
        p("L_wo:", f"s_sub_u32 {sC}, {sR}, 8", srd(WSRD, P_WO, 512 * 1024),
          f"s_lshl_b32 {sC}, {sC}, 2", f"s_add_u32 {sC}, {sC}, {sW}")
        p(f"v_lshrrev_b32 {vTMP}, 3, {vL}", f"v_lshlrev_b32 v{vW}, 10, {vTMP}",
          f"v_lshlrev_b32 {vTMP}, 1, {vTMP}", f"v_and_b32 {vTMP}, 4, {vTMP}", f"v_and_b32 {vTMP2}, 7, {vL}",
          f"v_xor_b32 {vTMP}, {vTMP}, {vTMP2}", f"v_lshl_add_u32 v{vW}, {vTMP}, 4, v{vW}",
          f"s_lshl_b32 {sT0}, {sC}, 7", f"v_add_u32 v{vW}, {sT0}, v{vW}")
        for q in range(1, 4):
            p(f"v_add_u32 v{vW + q}, {q * (8192 - 1024)}, v{vW}")
        p(f"s_lshl_b32 {sM0}, {sW}, 14", f"s_add_u32 {sM0}, {sM0}, {RING}", f"s_mov_b32 {sWO}, 0")

        def wstage(s):
            o = [f"s_add_u32 m0, {sM0}, {(s % NS) * 4096}", "s_nop 0"]
            o += [(f"buffer_load_dwordx4 v{vW + q}, {WSRD}, {sWO} offen offset:{q * 1024}{self.wnt} lds", f"w{s}") for q in range(4)]
            o += [f"s_add_u32 {sWO}, {sWO}, 32768"]
            return o
        p([wstage(s) for s in range(D)])
        p(f"v_lshrrev_b32 {vTMP}, 2, {vT}", f"v_lshl_add_u32 v{vRP}, {vG}, 3, {vTMP}", f"v_lshlrev_b32 v{vRP}, 7, v{vRP}",
          f"v_lshrrev_b32 {vTMP}, 1, {vTMP}", f"v_lshl_add_u32 v{vRP}, {vTMP}, 6, v{vRP}", f"v_and_b32 {vTMP}, 3, {vL}",
          f"v_lshl_add_u32 v{vRP}, {vTMP}, 4, v{vRP}", f"v_add_u32 v{vRP}, {sM0}, v{vRP}", f"v_xor_b32 v{vRP + 1}, 64, v{vRP}")
        p(f"s_lshl_b32 {sM1}, {sW}, 12", f"v_add_u32 v{vD16}, {sM1}, {vL16}",
          f"v_lshlrev_b32 v{vRA}, 10, {vT}", f"v_lshl_add_u32 v{vRA}, {vG}, 4, v{vRA}", f"s_lshl_b32 {sT0}, {sC}, 7",
          f"v_add_u32 v{vRA}, {sT0}, v{vRA}",
          f"s_lshr_b32 {sT0}, {sC}, 1", f"s_mul_i32 {sT0}, {sT0}, {REG}", f"s_and_b32 {sT1}, {sC}, 1",
          f"s_lshl_b32 {sT3}, {sT1}, 11", f"s_add_u32 {sT3}, {sT3}, {sT0}", f"v_add_u32 v{vOA}, {sT3}, {vL16}",
          f"s_lshl_b32 {sT3}, {sT1}, 7", f"s_add_u32 {sT3}, {sT3}, {sT0}", f"v_lshl_add_u32 v{vSO}, {vL}, 2, {sT3}",
          f"v_mov_b32 {vTMP2}, {OOB:#x}", f"v_cmp_gt_u32 vcc, 32, {vL}", f"v_cndmask_b32 v{vSO}, {vTMP2}, v{vSO}, vcc",
          f"v_and_b32 {vPA}, 31, {vL}", f"v_lshlrev_b32 {vPA}, 2, {vPA}",
          f"s_lshl_b32 {sT1}, {sT1}, 11", f"s_add_u32 {sT1}, {sT1}, {sT0}", f"s_add_u32 {sT1}, {sT1}, 256",
          f"v_lshl_add_u32 {vTA}, {vL}, 7, {sT1}", f"v_mov_b32 {vTMP}, {sT3}", f"v_cmp_eq_u32 vcc, 16, {vL}",
          f"v_cndmask_b32 {vTA}, {vTA}, {vTMP}, vcc",
          f"s_lshl_b32 {sT0}, {sC}, 2", f"s_add_u32 {sT0}, {sT0}, {F_WO}", self.lane0_addr(vFA, sT0),
          f"s_mul_i32 {sIN}, {sG}, {O_GS:#x}", f"s_add_u32 {sIN}, {sIN}, {O_BASE:#x}",
          f"s_mul_i32 {sOUT}, {sG}, {X1_GS:#x}", f"s_add_u32 {sOUT}, {sOUT}, {X1_BASE:#x}", f"s_mov_b32 {sNEED}, 1",
          f"s_lshl_b32 {sROW}, {sG}, 18", srd(XS, P_X, 2097152),
          f"v_add_u32 {vTA}, {sOUT}, {vTA}", self.keep_lanes(vTA, 17))
        for s in range(16):
            p(W(vm=[f"w{s}"]))
            if s + D < 16:
                p(wstage(s + D))
            if s == 13:
                p(self.touch(32768), self.hs_issue())
            for t in range(4):
                for h in range(2):
                    off = (s % NS) * 4096 + (t % 2) * 8 + h * 512
                    p(f"ds_read_b64_tr_b16 {ar(16 * s + 4 * t + 2 * h, 2)}, v{vRP + t // 2} offset:{off}")
            p("s_waitcnt lgkmcnt(0)")
        p(self.stamp(), self.hs_check())

        faddr = lambda par, s: (vL16, par * XBUF + s * 1024)

        def dma(par):
            o = [f"s_add_u32 m0, {sM1}, {par * XBUF}", f"s_add_u32 {sNEED}, {sNEED}, 1"]
            o += [(f"buffer_load_dwordx4 {vr(RS + 4 * h)}, v{vRA}, {XS}, {sROW} offen offset:{64 * h} sc1", "res") for h in range(2)]
            o += [(f"buffer_load_dwordx4 v{vD16}, {WS}, {sIN} offen offset:{1024 * q} sc1 lds", "dma") for q in range(4)]
            o += self.adv(sIN, None, 16384, 16)
            o += [f"s_add_u32 {sROW}, {sROW}, 16384", f"s_and_b32 {sROW}, {sROW}, 0x1fffff"]
            return o

        def cinit(par):
            a = ACC + 16 * par
            o = [W(vm=["res"], local=["res"])]
            for i in range(8):
                o.append(f"v_lshlrev_b32 v{a + 2 * i}, 16, v{RS + i}")
                o.append(f"v_and_b32 v{a + 2 * i + 1}, 0xffff0000, v{RS + i}")
            return o
        p(self.poll_issue(sFB), self.poll_check(sFB, "wo", "pro"), dma(0), cinit(0), "s_waitcnt vmcnt(0)", "s_barrier",
          self.first_reads(faddr, XR, NX, RA, 0), self.stamp(),
          f"s_mov_b32 {sCNT}, 15", f"s_cmp_lg_u32 {sT2}, 0", "s_cbranch_scc1 L_wo_slow")

        def epilogue(par, sc):
            a = ACC + 16 * par
            o = []
            for h in range(2):
                for i in range(4):
                    o.append(f"v_cvt_pk_bf16_f32 v{OB + 4 * h + i}, v{a + 8 * h + 2 * i}, v{a + 8 * h + 2 * i + 1}")
                o.append((f"buffer_store_dwordx4 {vr(OB + 4 * h)}, v{vOA}, {WS}, {sOUT} offen offset:{256 + 1024 * h}{sc}", "out"))
            s_, q_, t_ = TP, TP + 1, TP + 2
            o += [f"v_add_f32 v{s_}, v{a}, v{a + 1}", f"v_mul_f32 v{q_}, v{a}, v{a}", f"v_fmac_f32 v{q_}, v{a + 1}, v{a + 1}"]
            for i in range(2, 16):
                o += [f"v_add_f32 v{s_}, v{s_}, v{a + i}", f"v_fmac_f32 v{q_}, v{a + i}, v{a + i}"]
            o += [f"v_permlane16_swap_b32 v{s_}, v{q_}", f"v_add_f32 v{s_}, v{s_}, v{q_}", f"v_mov_b32 v{t_}, v{s_}",
                  f"v_permlane32_swap_b32 v{s_}, v{t_}", f"v_add_f32 v{s_}, v{s_}, v{t_}",
                  (f"buffer_store_dword v{s_}, v{vSO}, {WS}, {sOUT} offen{sc}", "out")]
            return o

        def body(key, mode, par, epi, pre):
            sc = " sc1" if mode == "slow" else ""
            s = self.seg(f"wo_{key}_{mode}")
            bb = []
            for k in range(16):
                for t in range(4):
                    d = vr(ACC + 16 * par + 4 * t)
                    bb.append(f"v_mfma_f32_16x16x32_bf16 {d}, {ar(16 * k + 4 * t)}, {vr(XR + 4 * (k % NX))}, {d}")
            fixed, xs, nxt, bg = self.xreads(par, 4, faddr, XR, NX, RA, pair=2)
            pl = []
            if pre:
                pl.append((0, self.poll_issue(sFB)))
                pl += [(17, x) for x in self.poll_check(sFB, "wo" + key, mode)]
                pl += [(17, x) for x in dma(1 - par)]
            main = []
            if epi:
                main += [(1, x, 2 if "permlane" in str(x) else 0) for x in epilogue(1 - par, sc)]
                main += [(1, x) for x in self.adv(sOUT, None, 32768, 16)]
            if pre:
                main += [(30, x) for x in self.touch(32768)]
                main += [(44, x) for x in cinit(1 - par)]
            if epi:
                main += [(62, x) for x in self.publish(sc)]
            dm = ["dma"] if pre else []
            self.stamp_at(fixed, bg)
            fixed.setdefault(bg, []).append(W(lgkm=["x15"], vm=dm, local=["x15"] + dm))
            if pre:
                fixed[bg].append("s_barrier")
                xs = xs + nxt
            s(weave(bb, fixed, [xs, pl, main], name=s.name))
            return s

        for mode, sc in (("fast", ""), ("slow", " sc1")):
            if mode == "slow":
                self.seg("wo_slow_lab")("L_wo_slow:")
            b0 = body("b0", mode, 0, False, True)
            self.seg("top")(".p2align 4", f"L_wo_{mode}_loop:")
            b1 = body("odd", mode, 1, True, True)
            b2 = body("even", mode, 0, True, True)
            b2(f"s_sub_u32 {sCNT}, {sCNT}, 1", f"s_cmp_eq_u32 {sCNT}, 8", f"s_cbranch_scc1 L_wo_{mode}_sw",
               f"s_cmp_lg_u32 {sCNT}, 0", f"s_cbranch_scc1 L_wo_{mode}_loop")
            self.cold(f"L_wo_{mode}_sw:", srd(XS, P_WS, 2097152, X2_BASE), f"s_lshl_b32 {sROW}, {sG}, 18",
                      f"s_add_u32 {sROW}, {sROW}, 16384", f"v_mov_b32 {vTA}, {OOB:#x}", f"s_branch L_wo_{mode}_loop")
            b3 = body("last", mode, 1, True, False)
            dr = self.seg(f"wo_{mode}_drain")
            dr(epilogue(1, sc), self.final_publish(sc), self.stamp(), "s_endpgm")
            self.finish([p, b0, b1, b2, b1, b2, b3, dr])

    def dn(self):
        vW, vRT, vXA, vMA, vPW, vPR, vRR, vSR, vOA, vSO, vEA = 16, 20, 24, 28, 29, 30, 31, 32, 33, 34, 35
        R2, RES, ACC, XR, RD, TP, XL = 36, 40, 48, 80, 136, 152, 168
        D, NS, RING, MISC, PB = 3, 4, 49152, 34816, 17408
        P = 26
        p = self.seg("dn_pro")
        p("L_dn:", f"s_sub_u32 {sC}, {sR}, 24")
        p(f"s_or_b32 {sT1}, {sC}, {sW}", f"s_cmp_eq_u32 {sT1}, 0", f"s_cselect_b32 {sT1}, 0, {OOB:#x}",
          f"v_add_u32 {vTMP}, {sT1}, {vL16}", f"v_mov_b32 {vTMP2}, 0x7fffffff", f"v_cmp_eq_u32 vcc, {F_ALARM // 16}, {vL}",
          f"v_mov_b32 v{TP + 1}, 0", f"v_mov_b32 v{TP + 2}, 0", f"v_mov_b32 v{TP + 3}, 0",
          f"v_cndmask_b32 v{TP}, {vF}, {vTMP2}, vcc",
          (f"buffer_store_dwordx4 {vr(TP)}, {vTMP}, {WS}, {sFB} offen sc1", "fz"),
          (f"buffer_store_dwordx4 {vr(TP)}, {vTMP}, {WS}, {sFB} offen offset:{F_SLOW} sc1", "fz"),
          srd(WSRD, P_D, 1792 * 1024), srd(XS, P_X, 2097152))
        p(f"v_lshrrev_b32 {vTMP}, 3, {vL}", f"v_lshlrev_b32 v{vW}, 10, {vTMP}", f"v_and_b32 {vTMP2}, 7, {vL}",
          f"v_lshl_add_u32 v{vXA}, {vTMP2}, 4, v{vW}", f"s_lshl_b32 {sT0}, {sC}, 7", f"v_add_u32 v{vXA}, {sT0}, v{vXA}",
          f"v_add_u32 v{vXA + 1}, 8192, v{vXA}",
          f"s_lshl_b32 {sROW}, {sG}, 4", f"s_add_u32 {sROW}, {sROW}, {sW}", f"s_add_u32 {sROW}, {sROW}, 127",
          f"s_lshl_b32 {sROW}, {sROW}, 14")
        for i in range(5):
            p(f"s_and_b32 {sT0}, {sROW}, 0x1fffff")
            for h in range(2):
                p((f"buffer_load_dwordx4 {vr(XL + 8 * i + 4 * h)}, v{vXA + h}, {XS}, {sT0} offen", f"x0_{i}"))
            p(f"s_add_u32 {sROW}, {sROW}, 65536")
        p(f"s_lshl_b32 {sT0}, {sG}, 4", f"s_add_u32 {sT0}, {sT0}, {sW}", f"s_add_u32 {sT0}, {sT0}, 127",
          f"v_lshl_add_u32 {vTA}, {vL}, 2, {sT0}", f"v_and_b32 {vTA}, 127, {vTA}",
          f"s_mul_i32 {sT0}, {sG}, {S0_GS:#x}", f"s_lshl_b32 {sT3}, {sC}, 7", f"s_add_u32 {sT0}, {sT0}, {sT3}",
          f"s_add_u32 {sT0}, {sT0}, {S0_BASE:#x}", f"v_lshl_add_u32 {vTA}, {vTA}, 10, {sT0}", self.keep_lanes(vTA, 5),
          self.touch(0)[:1],
          f"s_lshl_b32 {sT0}, {sG}, 2", f"s_add_u32 {sT0}, {sT0}, {sT1}", self.lane0_addr(vTMP, sT0),
          f"v_mov_b32 {vTMP2}, {sPAT}", W(vm=["fz"]), f"buffer_store_dword {vTMP2}, {vTMP}, {DBG}, 0 offen sc1")
        p(f"v_lshrrev_b32 {vTMP}, 3, {vL}", f"v_and_b32 {vTMP}, 2, {vTMP}", f"v_and_b32 {vTMP2}, 7, {vL}",
          f"v_xor_b32 {vTMP}, {vTMP}, {vTMP2}", f"v_lshl_add_u32 v{vW}, {vTMP}, 4, v{vW}",
          f"s_lshl_b32 {sT0}, {sC}, 7", f"v_add_u32 v{vW}, {sT0}, v{vW}",
          f"v_xor_b32 v{vW + 1}, 64, v{vW}", f"v_add_u32 v{vW + 3}, {3 * 7168}, v{vW + 1}",
          f"v_add_u32 v{vW + 1}, 7168, v{vW + 1}", f"v_add_u32 v{vW + 2}, {2 * 7168}, v{vW}",
          f"s_lshl_b32 {sM0}, {sW}, 14", f"s_add_u32 {sM0}, {sM0}, {RING}", f"s_mul_i32 {sWO}, {sW}, {14 * 32768}")
        p(f"v_lshrrev_b32 {vTMP}, 3, {vL}", f"v_and_b32 {vTMP2}, 7, {vL}", f"v_lshlrev_b32 v{vSO}, 2, {vTMP}",
          f"v_lshl_add_u32 v{vSO}, {vTMP2}, 6, v{vSO}", f"s_lshl_b32 {sT0}, {sC}, 7", f"v_add_u32 v{vSO}, {sT0}, v{vSO}",
          f"v_cmp_gt_u32 vcc, 2, {vTMP2}", f"v_mov_b32 {vTMP}, {OOB:#x}", f"v_cndmask_b32 v{vSO}, {vTMP}, v{vSO}, vcc",
          f"v_cmp_eq_u32 s[30:31], 1, {vTMP2}")
        dppm = "row_mask:0xf bank_mask:0xf"
        for i in range(5):
            p(W(vm=[f"x0_{i}"]))
            if i == 1:
                p(self.hs_issue())
            for h in range(2):
                x, s_, q_ = XL + 8 * i + 4 * h, TP + 2 * h, TP + 2 * h + 1
                for k in range(4):
                    p(f"v_dot2_f32_bf16 v{s_}, v{x + k}, v{ONES}, {'0' if k == 0 else f'v{s_}'}",
                      f"v_dot2_f32_bf16 v{q_}, v{x + k}, v{x + k}, {'0' if k == 0 else f'v{q_}'}")
            for pat in ("quad_perm:[1,0,3,2]", "quad_perm:[2,3,0,1]", "row_half_mirror"):
                for j in range(4):
                    p(f"v_add_f32_dpp v{TP + j}, v{TP + j}, v{TP + j} {pat} {dppm}")
            for h in range(2):
                p(f"v_cndmask_b32 v{XL + 8 * i + h}, v{TP + 2 * h}, v{TP + 2 * h + 1}, s[30:31]")
        p(self.hs_check())
        p(f"s_lshl_b32 {sT0}, {sC}, 2", f"s_add_u32 {sT0}, {sT0}, {sW}", f"s_lshl_b32 {sT0}, {sT0}, 2",
          f"s_add_u32 {sT0}, {sT0}, {F_DN}", self.lane0_addr(vFA, sT0), f"v_add_u32 v{vEA}, {F_SLOW + F_EXP - F_DN}, {vFA}",
          f"s_lshl_b32 {sROW}, {sG}, 4", f"s_add_u32 {sROW}, {sROW}, {sW}", f"s_add_u32 {sROW}, {sROW}, 127",
          f"s_lshl_b32 {sROW}, {sROW}, 10", f"s_mul_i32 {sT1}, {sG}, {S0_GS:#x}", f"s_add_u32 {sT1}, {sT1}, {S0_BASE:#x}",
          f"v_mov_b32 {vF}, 16", f"s_cmp_lg_u32 {sT2}, 0", "s_cbranch_scc1 L_dn_s0slow")

        def s0out(seg, sc):
            for i in range(5):
                seg(f"s_and_b32 {sT0}, {sROW}, 0x1ffff", f"s_add_u32 {sT0}, {sT0}, {sT1}")
                for h in range(2):
                    seg(f"buffer_store_dword v{XL + 8 * i + h}, v{vSO}, {WS}, {sT0} offen offset:{32 * h}{sc}")
                seg(f"s_add_u32 {sROW}, {sROW}, 4096")
            seg(self.final_publish(sc))
        s0out(p, "")
        p("L_dn_s0done:")
        self.cold("L_dn_s0slow:")
        s0out(self.cold, " sc1")
        self.cold("s_branch L_dn_s0done")
        p(self.stamp())

        def wstage(s):
            o = [f"s_add_u32 m0, {sM0}, {(s % NS) * 4096}", "s_nop 0"]
            o += [(f"buffer_load_dwordx4 v{vW + q}, {WSRD}, {sWO} offen offset:{q * 1024}{self.wnt} lds", f"w{s}") for q in range(4)]
            o += [f"s_add_u32 {sWO}, {sWO}, 32768"]
            return o
        for s in range(D):
            p(wstage(s))
        p(f"v_lshrrev_b32 {vTMP}, 2, {vT}", f"v_lshl_add_u32 v{vRT}, {vG}, 3, {vTMP}", f"v_lshlrev_b32 v{vRT}, 7, v{vRT}",
          f"v_lshrrev_b32 {vTMP}, 1, {vTMP}", f"v_and_b32 {vTMP2}, 1, {vG}", f"v_lshl_add_u32 {vTMP}, {vTMP2}, 1, {vTMP}",
          f"v_lshl_add_u32 v{vRT}, {vTMP}, 5, v{vRT}", f"v_and_b32 {vTMP}, 3, {vL}",
          f"v_lshl_add_u32 v{vRT}, {vTMP}, 3, v{vRT}", f"v_add_u32 v{vRT}, {sM0}, v{vRT}")
        for t in range(1, 4):
            p(f"v_xor_b32 v{vRT + t}, {32 * t}, v{vRT}")
        p(f"s_mul_i32 {sT0}, {sW}, {14 * 1024}", f"v_add_u32 v{vXA}, {sT0}, {vL16}")
        for q in range(1, 4):
            p(f"v_add_u32 v{vXA + q}, {4096 * q}, v{vXA}")
        p(f"s_lshr_b32 {sT0}, {sC}, 1", f"s_mul_i32 {sT0}, {sT0}, {REG}", f"s_and_b32 {sT1}, {sC}, 1", f"s_lshl_b32 {sT1}, {sT1}, 11",
          f"s_add_u32 {sT0}, {sT0}, {sT1}", f"s_lshl_b32 {sT1}, {sW}, 9", f"s_add_u32 {sT0}, {sT0}, {sT1}", f"s_add_u32 {sT0}, {sT0}, 256",
          f"v_add_u32 v{vMA}, {sT0}, {vL16}", f"s_mul_i32 {sT0}, {sW}, {REG}", f"v_lshl_add_u32 {vTMP}, {vT}, 4, {sT0}",
          f"v_cmp_gt_u32 vcc, 32, {vL}", f"v_cndmask_b32 v{vMA}, {vTMP}, v{vMA}, vcc",
          f"v_mov_b32 {vTMP}, {OOB:#x}", f"v_cmp_gt_u32 vcc, 48, {vL}", f"v_cndmask_b32 v{vMA}, {vTMP}, v{vMA}, vcc",
          f"s_lshl_b32 {sM1}, {sW}, 10", f"s_add_u32 {sM1}, {sM1}, {MISC}")
        p(f"s_mul_i32 {sT0}, {sW}, {REG}", f"v_mul_u32_u24 v{vPW}, 272, {vT}", f"v_lshl_add_u32 v{vPW}, {vG}, 4, v{vPW}",
          f"v_add_u32 v{vPW}, {sT0}, v{vPW}",
          f"s_lshl_b32 {sT0}, {sW}, 2", f"v_add_u32 {vTMP3}, {sT0}, {vG}",
          f"v_mul_u32_u24 v{vPR}, 272, {vTMP3}", f"v_lshl_add_u32 v{vPR}, {vT}, 4, v{vPR}",
          f"v_lshrrev_b32 {vTMP}, 2, {vT}", f"v_lshlrev_b32 v{vRR}, 10, {vTMP}", f"v_add_u32 v{vRR}, {MISC}, v{vRR}",
          f"v_and_b32 {vTMP}, 3, {vT}", f"v_lshl_add_u32 v{vSR}, {vTMP}, 6, v{vRR}", f"v_lshl_add_u32 v{vSR}, {vTMP3}, 2, v{vSR}",
          f"v_and_b32 {vTMP}, 2, {vT}", f"v_lshl_add_u32 v{vRR}, {vTMP}, 7, v{vRR}", f"v_lshl_add_u32 v{vRR}, {vTMP3}, 4, v{vRR}",
          f"v_and_b32 {vTMP}, 1, {vT}", f"v_lshl_add_u32 v{vRR}, {vTMP}, 3, v{vRR}",
          f"v_lshlrev_b32 v{vOA}, 10, {vTMP3}", f"v_lshl_add_u32 v{vOA}, {vT}, 3, v{vOA}", f"s_lshl_b32 {sT0}, {sC}, 7",
          f"v_add_u32 v{vOA}, {sT0}, v{vOA}",
          f"v_lshlrev_b32 v{vSO}, 2, {vTMP3}", f"v_lshl_add_u32 v{vSO}, {vT}, 6, v{vSO}", f"v_add_u32 v{vSO}, {sT0}, v{vSO}",
          f"v_mov_b32 {vTMP}, {OOB:#x}", f"v_cmp_gt_u32 vcc, 2, {vT}", f"v_cndmask_b32 v{vSO}, {vTMP}, v{vSO}, vcc",
          f"v_and_b32 {vTMP}, 1, {vT}", f"v_cmp_eq_u32 s[30:31], 1, {vTMP}",
          f"v_min_u32 {vPA}, 13, {vL}", f"s_mul_i32 {sT0}, {sW}, 56", f"s_add_u32 {sT0}, {sT0}, {F_GU}",
          f"v_lshl_add_u32 {vPA}, {vPA}, 2, {sT0}",
          f"s_mul_i32 {sIN}, {sG}, {H_GS:#x}", f"s_add_u32 {sIN}, {sIN}, {H_BASE:#x}",
          f"s_mul_i32 {sINB}, {sG}, {X1_GS:#x}", f"s_add_u32 {sINB}, {sINB}, {X1_BASE:#x}", f"s_mov_b32 {sNEED}, 1",
          f"s_lshl_b32 {sROW}, {sG}, 18", f"s_lshl_b32 {sST}, {sG}, 14", f"s_add_u32 {sST}, {sST}, {S2_BASE:#x}",
          srd(XS, P_WS, 2097152, X2_BASE))
        for s in range(14):
            p(W(vm=[f"w{s}"]))
            if s + D < 14:
                p(wstage(s + D))
            for t in range(4):
                for h in range(2):
                    p(f"ds_read_b64_tr_b16 {ar(16 * s + 4 * t + 2 * h, 2)}, v{vRT + t} offset:{(s % NS) * 4096 + h * 512}")
            p("s_waitcnt lgkmcnt(0)")
        p(self.stamp())

        def xload(s):
            return (f"buffer_load_dwordx4 {vr(XR + 4 * s)}, v{vXA + s // 4}, {WS}, {sIN} offen offset:{(s % 4) * 1024} sc1", f"x{s}")

        def misc(par):
            return [f"s_add_u32 m0, {sM1}, {par * 4096}", f"s_add_u32 {sNEED}, {sNEED}, 1",
                    (f"buffer_load_dwordx4 v{vMA}, {WS}, {sINB} offen sc1 lds", "misc")] + self.adv(sINB, None, 32768, 16)
        NE = (56 - P + 3) // 4
        p(self.poll_issue(sFB), self.poll_check(sFB, "dn", "pro"), misc(0), [xload(s) for s in range(NE)], self.stamp(),
          f"s_mov_b32 {sCNT}, 7", f"s_cmp_lg_u32 {sT2}, 0", "s_cbranch_scc1 L_dn_slow")

        def epi_a(par):
            a = ACC + 16 * par
            return [(f"ds_write_b128 v{vPW}, {vr(a + 4 * t)} offset:{par * PB + 64 * t}", "pw") for t in range(4)]

        def epi_b(par, sc, stats, export):
            o = [(f"ds_read_b128 {vr(RD + 4 * w)}, v{vPR} offset:{par * PB + REG * w}", f"pr{w}") for w in range(4)]
            o.append(W(lgkm=["pr1"]))
            o += [f"v_add_f32 v{RD + i}, v{RD + i}, v{RD + 4 + i}" for i in range(4)]
            o.append(W(lgkm=["pr3"]))
            o += [f"v_add_f32 v{RD + 8 + i}, v{RD + 8 + i}, v{RD + 12 + i}" for i in range(4)]
            o += [f"v_add_f32 v{RD + i}, v{RD + i}, v{RD + 8 + i}" for i in range(4)]
            o += [f"v_fma_f32 v{RD + i}, v{RD + i}, v{R2 + par}, v{RES + 4 * par + i}" for i in range(4)]
            o += [f"v_cvt_pk_bf16_f32 v{RD + 4 + i}, v{RD + 2 * i}, v{RD + 2 * i + 1}" for i in range(2)]
            dsc = " sc1" if export else sc
            o.append((f"buffer_store_dwordx2 {vr(RD + 4, 2)}, v{vOA}, {XS}, {sROW} offen{dsc}", "out"))
            o += [f"s_add_u32 {sROW}, {sROW}, 16384"]
            if not stats:
                o += [f"s_and_b32 {sROW}, {sROW}, 0x1fffff"]
                return o
            s_, q_ = RD + 8, RD + 9
            o += [f"v_add_f32 v{s_}, v{RD}, v{RD + 1}", f"v_mul_f32 v{q_}, v{RD}, v{RD}", f"v_fmac_f32 v{q_}, v{RD + 1}, v{RD + 1}"]
            for i in (2, 3):
                o += [f"v_add_f32 v{s_}, v{s_}, v{RD + i}", f"v_fmac_f32 v{q_}, v{RD + i}, v{RD + i}"]
            o += [f"v_add_f32_dpp v{s_}, v{s_}, v{s_} quad_perm:[1,0,3,2] {dppm}",
                  f"v_add_f32_dpp v{q_}, v{q_}, v{q_} quad_perm:[1,0,3,2] {dppm}",
                  f"v_cndmask_b32 v{s_}, v{s_}, v{q_}, s[30:31]"]
            o += [f"v_add_f32_dpp v{s_}, v{s_}, v{s_} row_ror:{n} {dppm}" for n in (2, 4, 8)]
            o += [(f"buffer_store_dword v{s_}, v{vSO}, {WS}, {sST} offen{dsc}", "out"), f"s_add_u32 {sST}, {sST}, 1024"]
            return o

        def prep(par):
            a, b, c = TP, TP + 1, TP + 2
            r = RES + 4 * par
            o = [(f"ds_read_b32 v{a}, v{vSR} offset:{par * 4096 + 512}", "ms"),
                 (f"ds_read_b64 v[{TP + 4}:{TP + 5}], v{vRR} offset:{par * 4096}", "mr"), W(lgkm=["mr"])]
            o += [f"v_add_f32_dpp v{a}, v{a}, v{a} row_ror:2 {dppm}",
                  f"v_lshlrev_b32 v{r}, 16, v{TP + 4}", f"v_and_b32 v{r + 1}, 0xffff0000, v{TP + 4}",
                  f"v_add_f32_dpp v{a}, v{a}, v{a} row_ror:4 {dppm}",
                  f"v_lshlrev_b32 v{r + 2}, 16, v{TP + 5}", f"v_and_b32 v{r + 3}, 0xffff0000, v{TP + 5}",
                  f"v_add_f32_dpp v{a}, v{a}, v{a} row_ror:8 {dppm}",
                  f"v_mul_f32 v{a}, {f32(1 / 512)}, v{a}",
                  f"v_mov_b32_dpp v{b}, v{a} quad_perm:[0,0,2,2] {dppm}", f"v_mov_b32_dpp v{c}, v{a} quad_perm:[1,1,3,3] {dppm}",
                  f"v_fma_f32 v{c}, -v{b}, v{b}, v{c}", f"v_max_f32 v{c}, 0, v{c}", f"v_add_f32 v{c}, {f32(1e-5)}, v{c}",
                  f"v_rcp_f32 v{R2 + par}, v{c}"]
            return o

        def body(key, mode, par, epi, pre, stats=True, export=False, pend=False, pexp=False):
            sc = " sc1" if mode == "slow" else ""
            s = self.seg(f"dn_{key}_{mode}")
            bb = []
            for k in range(14):
                for t in range(4):
                    d = vr(ACC + 16 * par + 4 * t)
                    bb.append(f"v_mfma_f32_16x16x32_bf16 {d}, {ar(16 * k + 4 * t)}, {vr(XR + 4 * k)}, {'0' if k == 0 else d}")
            fixed = {4 * k: [W(vm=[f"x{k}"], prior=[f"x{k}"]) if k < NE else W(vm=[f"x{k}"], local=[f"x{k}"])]
                     for k in range(14)}
            ld = []
            if pre:
                ld.append((0, self.poll_issue(sFB)))
            ld += [(P + 4 * k - 56, xload(k)) for k in range(NE, 14)]
            if pre:
                ld += [(P - 3, x) for x in self.poll_check(sFB, ("dnp2" if mode == "p2" else "dn") + key,
                                                           "slow" if mode == "p2" else mode)]
                ld += [(P - 3, x) for x in self.adv(sIN, None, 65536, 16)]
                ld += [(P - 3, x) for x in misc(1 - par)]
                ld += [(max(P + 4 * k, 4 * k + 3), xload(k)) for k in range(NE)]
            main = []
            if epi:
                main += [(1, x) for x in epi_a(1 - par)]
            if pend:
                main += [(5, x) for x in self.publish(sc, local=False)]
                if pexp:
                    main += [(5, f"v_mov_b32 {vTMP}, 64"), (5, f"buffer_store_dword {vTMP}, v{vEA}, {WS}, {sFB0} offen sc1")]
            BG = 9
            self.stamp_at(fixed, BG)
            fixed.setdefault(BG, []).extend([W(lgkm=["pw", "mr"], vm=["misc"], prior=["misc", "mr"],
                                               local=["pw"] if epi else []), "s_barrier"])
            if epi:
                eb = epi_b(1 - par, "" if mode == "p2" else sc, stats, export)
                main += [(BG, x, 4 if i == 4 else (1 if "_dpp" in str(x) else 0)) for i, x in enumerate(eb)]
            pr = prep(par)
            st2 = [(BG + 2, x, 4 if i == 2 else (1 if i == 11 else 0)) for i, x in enumerate(pr)]
            s(weave(bb, fixed, [ld, main, st2], cap=[2, 3], name=s.name))
            return s

        tails = []
        for mode in ("fast", "slow"):
            if mode == "slow":
                self.seg("dn_slow_lab")("L_dn_slow:")
            b0 = body("b0", mode, 0, False, True)
            b1 = body("b1", mode, 1, True, True, export=True)
            b2 = body("b2", mode, 0, True, True, pend=True, pexp=True)
            self.seg("top")(".p2align 4", f"L_dn_{mode}_loop:")
            b3 = body("odd", mode, 1, True, True, pend=True)
            b4 = body("even", mode, 0, True, True, pend=True)
            b4(f"s_sub_u32 {sCNT}, {sCNT}, 1", f"s_cmp_lg_u32 {sCNT}, 0", f"s_cbranch_scc1 L_dn_{mode}_loop")
            sw = self.seg("dn_sw")
            sw(srd(XS, P_OUT, 2097152), f"s_lshl_b32 {sROW}, {sG}, 18", f"s_add_u32 {sROW}, {sROW}, 16384",
               f"s_mov_b32 {sCNT}, 6")
            b17 = body("b17", mode, 1, True, True, stats=False, pend=True)
            if mode == "fast":
                self.seg("top")(".p2align 4", "L_dn_loop2:")
                c1 = body("even", "p2", 0, True, True, stats=False)
                c2 = body("odd", "p2", 1, True, True, stats=False)
                c2(f"s_sub_u32 {sCNT}, {sCNT}, 1", f"s_cmp_lg_u32 {sCNT}, 0", "s_cbranch_scc1 L_dn_loop2")
                c3 = body("b30", "p2", 0, True, True, stats=False)
                c4 = body("last", "p2", 1, True, False, stats=False)
                dr = self.seg("dn_drain")
                dr(epi_a(1), "s_waitcnt lgkmcnt(0)", "s_barrier", epi_b(1, "", False, False), "s_waitcnt vmcnt(0)",
                   self.stamp(), "s_endpgm")
                tails = [c1, c2, c1, c2, c3, c4, dr]
            else:
                b17("s_branch L_dn_loop2")
            self.finish([p, b0, b1, b2, b3, b4, b3, b4, sw, b17] + tails)

    def qkv(self):
        vW, vRT, vXD, vXA, vD4, vSA, vOA, vOAK, vMW, vMR = 16, 17, 18, 22, 26, 27, 29, 30, 31, 32
        CSQ, CSK, CSV, BP, BO, BN = 36, 40, 44, 48, 52, 56
        ACC, XR = 64, 96
        SV, MR, QB, KB, VB, PB_, SP, SO_, OO, LL, TP = 128, 136, 152, 156, 160, 164, 168, 172, 176, 180, 184
        NX, RA, D, NS, RING, SCR, PRO = 8, 4, 3, 4, 40960, 36864, 90112
        PXA, PSA, MK, K512 = 208, 212, 216, 220
        CSC = 0.25 * math.log2(math.e)
        p = self.seg("qkv_pro")
        p("L_qkv:", srd(WSRD, P_QKV, 512 * 3072), srd(XS, P_X, 2097152))
        p(f"v_lshrrev_b32 {vTMP}, 3, {vL}", f"s_lshl_b32 {sT0}, {sW}, 3", f"v_add_u32 {vTMP2}, {sT0}, {vTMP}",
          f"v_mul_u32_u24 v{vW}, 3072, {vTMP2}", f"v_and_b32 {vTMP}, 2, {vTMP}", f"s_and_b32 {sT0}, {sW}, 1",
          f"s_lshl_b32 {sT0}, {sT0}, 2", f"v_or_b32 {vTMP}, {sT0}, {vTMP}", f"v_and_b32 {vTMP2}, 7, {vL}",
          f"v_xor_b32 {vTMP}, {vTMP}, {vTMP2}", f"v_lshl_add_u32 v{vW}, {vTMP}, 4, v{vW}", f"s_lshl_b32 {sT0}, {sR}, 7",
          f"v_add_u32 v{vW}, {sT0}, v{vW}",
          f"s_mul_i32 {sM0}, {sW}, 3072", f"s_add_u32 {sM0}, {sM0}, {RING}", f"s_mov_b32 {sWO}, 0")
        for q in range(4):
            p(f"v_add_u32 {vTMP}, {4 * q}, {vG}", f"v_xor_b32 {vTMP2}, {vTMP}, {vT}", f"v_lshlrev_b32 v{vXD + q}, 10, {vG}",
              f"v_lshl_add_u32 v{vXD + q}, {vTMP2}, 4, v{vXD + q}", f"s_lshl_b32 {sT0}, {sW}, 8",
              f"s_add_u32 {sT0}, {sT0}, {3072 * q}", f"v_add_u32 v{vXD + q}, {sT0}, v{vXD + q}")
        p(f"s_lshl_b32 {sM1}, {sW}, 12", f"s_lshl_b32 {sROW}, {sG}, 18", f"s_sub_u32 {sROW}, {sROW}, 16384",
          f"s_and_b32 {sROW}, {sROW}, 0x1fffff")

        def wstage(s):
            o = [f"s_add_u32 m0, {sM0}, {(s % NS) * 12288}", "s_nop 0"]
            o += [(f"buffer_load_dwordx4 v{vW}, {WSRD}, {sWO} offen offset:{q * 1024}{self.wnt} lds", f"w{s}") for q in range(3)]
            o += [f"s_add_u32 {sWO}, {sWO}, {32 * 3072}"]
            return o

        def xdma(par, base=0):
            o = [f"s_add_u32 m0, {sM1}, {base + par * XBUF}", f"s_lshr_b32 {sST}, {sROW}, 4"]
            o += [(f"buffer_load_dwordx4 v{vXD + q}, {XS}, {sROW} offen offset:{1024 * q} sc1 lds", "dma") for q in range(4)]
            return o

        def sdma(par):
            return [f"s_add_u32 m0, {sEVT}, {par * XBUF}", f"s_add_u32 {sROW}, {sROW}, 16384",
                    (f"buffer_load_dword v{vD4}, {SS}, {sST} offen sc1 lds", "dma"), f"s_and_b32 {sROW}, {sROW}, 0x1fffff"]
        nextrow = [f"s_add_u32 {sROW}, {sROW}, 16384", f"s_and_b32 {sROW}, {sROW}, 0x1fffff"]
        p(wstage(0), xdma(0, PRO), f"s_mov_b32 {sINB}, {sST}", nextrow, xdma(1, PRO), f"s_mov_b32 {sOUTB}, {sST}", nextrow,
          wstage(1), wstage(2))
        p(f"v_lshrrev_b32 {vTMP}, 2, {vT}", f"v_mul_u32_u24 v{vRT}, 3072, {vG}", f"v_lshl_add_u32 v{vRT}, {vTMP}, 7, v{vRT}",
          f"v_lshrrev_b32 {vTMP}, 1, {vTMP}", f"v_and_b32 {vTMP2}, 1, {vG}", f"v_lshl_add_u32 {vTMP}, {vTMP2}, 1, {vTMP}",
          f"v_xor_b32 {vTMP}, {sW}, {vTMP}", f"v_lshl_add_u32 v{vRT}, {vTMP}, 5, v{vRT}", f"v_and_b32 {vTMP}, 3, {vL}",
          f"v_lshl_add_u32 v{vRT}, {vTMP}, 3, v{vRT}", f"v_add_u32 v{vRT}, {RING}, v{vRT}")
        for q in range(4):
            p(f"v_add_u32 {vTMP}, {4 * q}, {vG}", f"v_xor_b32 {vTMP}, {vTMP}, {vT}", f"v_lshlrev_b32 v{vXA + q}, 8, {vT}",
              f"v_lshl_add_u32 v{vXA + q}, {vTMP}, 4, v{vXA + q}", f"v_add_u32 v{PXA + q}, {PRO}, v{vXA + q}")
        p(f"s_lshl_b32 {sT0}, {sW}, 8", f"v_lshl_add_u32 v{vD4}, {vL}, 2, {sT0}", f"s_add_u32 {sEVT}, {sT0}, 16384",
          f"v_lshlrev_b32 v{vSA}, 8, {vG}", f"v_lshl_add_u32 v{vSA}, {vT}, 2, v{vSA}", f"v_add_u32 v{vSA}, 16384, v{vSA}",
          f"v_add_u32 v{vSA + 1}, {XBUF}, v{vSA}", f"v_add_u32 v{PSA}, {PRO}, v{vSA}", f"v_add_u32 v{PSA + 1}, {PRO}, v{vSA + 1}",
          f"v_mov_b32 v{K512}, {f32(1 / 512)}",
          f"s_lshl_b32 {sC}, {sR}, 2", f"s_add_u32 {sC}, {sC}, {sW}", f"s_lshl_b32 {sT0}, {sC}, 9",
          f"v_lshrrev_b32 {vTMP}, 1, {vG}", f"v_lshlrev_b32 v{vOAK}, 8, {vTMP}", f"v_lshl_add_u32 v{vOAK}, {vT}, 4, v{vOAK}",
          f"v_and_b32 {vTMP}, 1, {vG}", f"v_lshl_add_u32 v{vOAK}, {vTMP}, 3, v{vOAK}", f"v_add_u32 v{vOAK}, {sT0}, v{vOAK}",
          f"v_mov_b32 v{vOA}, v{vOAK}",
          f"s_lshl_b32 {sT0}, {sW}, 7", f"s_add_u32 {sT0}, {sT0}, {SCR}", f"v_lshl_add_u32 v{vMW}, {vT}, 3, {sT0}",
          f"v_lshl_add_u32 v{vMR}, {vG}, 5, {sT0}",
          f"v_and_b32 {vPA}, 31, {vL}", f"v_lshlrev_b32 {vPA}, 2, {vPA}", f"v_add_u32 {vPA}, {F_DN}, {vPA}",
          f"s_lshl_b32 {sT0}, {sC}, 2", self.lane0_addr(vFA, sT0),
          f"s_mul_i32 {sOUT}, {sG}, {O_GS:#x}", f"s_add_u32 {sOUT}, {sOUT}, {O_BASE:#x}", f"s_mov_b32 {sNEED}, 3",
          f"s_lshl_b32 {sT0}, {sC}, 9", f"s_add_u32 {sT0}, {sT0}, {sOUT}", f"v_lshl_add_u32 {vTA}, {vL}, 7, {sT0}",
          self.keep_lanes(vTA, 4),
          f"s_mul_i32 {sT0}, {sG}, {S0_GS:#x}", f"s_add_u32 {sT0}, {sT0}, {S0_BASE:#x}",
          f"s_add_u32 s16, s{P_WS}, {sT0}", f"s_addc_u32 s17, s{P_WS + 1}, 0", "s_mov_b32 s18, 0x20000", "s_mov_b32 s19, 0x20000")
        p(f"v_mov_b32 {vTMP3}, {f32(-1e30)}")
        for r in range(4):
            p(f"v_lshl_add_u32 {vTMP}, {vG}, 2, {r}", f"v_sub_u32 {vTMP2}, {vT}, {vTMP}",
              f"v_and_b32 v{TP}, 0x80000001, {vTMP2}", f"v_cmp_eq_u32 vcc, 0, v{TP}",
              f"v_cndmask_b32 v{BO + r}, {vTMP3}, {vF}, vcc",
              f"v_sub_u32 {vTMP2}, {vTMP}, {vT}", f"v_subrev_u32 {vTMP2}, 2, {vTMP2}",
              f"v_and_b32 v{TP}, 0x80000001, {vTMP2}", f"v_cmp_eq_u32 vcc, 0, v{TP}",
              f"v_cndmask_b32 v{BN + r}, {vTMP3}, {vF}, vcc")
        for i, b in enumerate((BN, BN + 2, BO, BO + 2)):
            p(f"v_mov_b32 {vTMP}, 0xffff", f"v_cmp_eq_u32 vcc, 0, v{b}", f"v_cndmask_b32 v{MK + i}, {vF}, {vTMP}, vcc",
              f"v_mov_b32 {vTMP}, 0xffff0000", f"v_cmp_eq_u32 vcc, 0, v{b + 1}", f"v_cndmask_b32 v{MK + i}, v{MK + i}, {vTMP}, vcc")

        def setmask(gval):
            o = [f"s_cmp_eq_u32 {sG}, {gval}", "s_cselect_b64 vcc, -1, 0", f"v_mov_b32 {vTMP3}, {f32(-1e30)}", "s_nop 1"]
            return o + [f"v_cndmask_b32 v{BP + r}, v{BN + r}, {vTMP3}, vcc" for r in range(4)]
        p(setmask(0))

        faddr = lambda par, s: (f"v{vXA + s % 4}", par * XBUF + (s // 4) * 4096)

        def mm(par, k, x):
            a = ACC + 16 * par
            c = lambda d: "0" if k == 0 else d
            w = lambda t: ar(12 * k + 4 * t)
            return [f"v_mfma_f32_16x16x32_bf16 {vr(a)}, {w(0)}, {x}, {c(vr(a))}",
                    f"v_mfma_f32_16x16x32_bf16 {vr(a + 4)}, {w(1)}, {x}, {c(vr(a + 4))}",
                    f"v_mfma_f32_16x16x32_bf16 {vr(a + 8)}, {x}, {w(2)}, {c(vr(a + 8))}"]
        for s in range(16):
            p(W(vm=[f"w{s}"] + (["dma"] if s == 0 else [])), "s_barrier")
            if s + D < 16:
                p(wstage(s + D))
            if s == 5:
                p(self.hs_issue())
            if s == 8:
                p(self.hs_check(), self.touch(16384), self.touch(16384), xdma(0))
            if s == 10:
                p(self.poll_issue(sPF))
            if s == 13:
                p(self.poll_check(sPF, "qkv", "pro"))
                for par, so in ((0, sINB), (1, sOUTB)):
                    p(f"s_add_u32 m0, {sEVT}, {PRO + par * XBUF}", "s_nop 0",
                      (f"buffer_load_dword v{vD4}, {SS}, {so} offen sc1 lds", "dma"))
                p(sdma(0), f"s_add_u32 {sNEED}, {sNEED}, 1")
            for t in range(3):
                for h in range(2):
                    p(f"ds_read_b64_tr_b16 {ar(12 * s + 4 * t + 2 * h, 2)}, v{vRT} offset:{(s % NS) * 12288 + t * 1024 + h * 512}")
            for par in range(2):
                p(f"ds_read_b128 {vr(XR + 4 * par)}, v{PXA + s % 4} offset:{faddr(par, s)[1]}")
            p("s_waitcnt lgkmcnt(0)")
            c = lambda d: "0" if s == 0 else d
            p(mm(0, s, vr(XR)), mm(1, s, vr(XR + 4)),
              f"v_mfma_f32_16x16x32_bf16 {vr(CSQ)}, {ar(12 * s)}, {vr(ONES)}, {c(vr(CSQ))}",
              f"v_mfma_f32_16x16x32_bf16 {vr(CSK)}, {ar(12 * s + 4)}, {vr(ONES)}, {c(vr(CSK))}",
              f"v_mfma_f32_16x16x32_bf16 {vr(CSV)}, {vr(ONES)}, {ar(12 * s + 8)}, {c(vr(CSV))}")
        p(self.stamp())

        def stats(par, vSA=vSA):
            a, b, c, d = TP + 16, TP + 17, TP + 18, TP + 19
            S, R, C = SV + 4 * par, SV + 4 * par + 1, SV + 4 * par + 2
            m = MR + 8 * par
            return [(f"ds_read2_b32 v[{a}:{b}], v{vSA + par} offset0:0 offset1:32", "st0"),
                    (f"ds_read2_b32 v[{c}:{d}], v{vSA + par} offset0:16 offset1:48", "st"), W(lgkm=["st"]),
                    f"v_add_f32 v{a}, v{a}, v{b}", f"v_add_f32 v{c}, v{c}, v{d}", f"v_permlane16_swap_b32 v{a}, v{c}",
                    f"v_add_f32 v{a}, v{a}, v{c}", f"v_mov_b32 v{b}, v{a}", f"v_permlane32_swap_b32 v{a}, v{b}",
                    f"v_add_f32 v{S}, v{a}, v{b}", f"v_add_f32 v{b}, v{a}, v{b}", f"v_permlane16_swap_b32 v{S}, v{b}",
                    f"v_mul_f32 v{a}, v{K512}, v{S}", f"v_fmaak_f32 v{b}, v{K512}, v{b}, {f32(1e-5)}",
                    f"v_fma_f32 v{b}, -v{a}, v{a}, v{b}", f"v_max_f32 v{b}, {f32(1e-5)}, v{b}",
                    f"v_rsq_f32 v{R}, v{b}", f"v_mul_f32 v{C}, {f32(CSC)}, v{R}",
                    (f"ds_write_b64 v{vMW}, v[{S}:{R}]", "mw"),
                    (f"ds_read_b128 {vr(m)}, v{vMR}", "mr0"), (f"ds_read_b128 {vr(m + 4)}, v{vMR} offset:16", "mr")]

        def epi_k(par):
            a, S, R = ACC + 16 * par + 4, SV + 4 * par, SV + 4 * par + 1
            o = [f"v_fma_f32 v{TP + 4 + r}, v{S}, v{CSK + r}, v{a + r}" for r in range(4)]
            o += [f"v_mul_f32 v{TP + 4 + r}, v{TP + 4 + r}, v{R}" for r in range(4)]
            o += [f"v_cvt_pk_bf16_f32 v{KB + 2 * par + i}, v{TP + 4 + 2 * i}, v{TP + 5 + 2 * i}" for i in range(2)]
            return o

        def epi_v(par):
            a, m = ACC + 16 * par + 8, MR + 8 * par
            o = [f"v_fma_f32 v{TP + 8 + r}, v{m + 2 * r}, v{CSV}, v{a + r}" for r in range(4)]
            o += [f"v_mul_f32 v{TP + 8 + r}, v{TP + 8 + r}, v{m + 2 * r + 1}" for r in range(4)]
            o += [f"v_cvt_pk_bf16_f32 v{VB + 2 * par + i}, v{TP + 8 + 2 * i}, v{TP + 9 + 2 * i}" for i in range(2)]
            return o

        def epilogue(par, sc):
            a, S, C = ACC + 16 * par, SV + 4 * par, SV + 4 * par + 2
            mx, t2 = TP + 12, TP + 13
            o = [f"v_fma_f32 v{TP + r}, v{S}, v{CSQ + r}, v{a + r}" for r in range(4)]
            o += [f"v_cvt_pk_bf16_f32 v{QB + i}, v{TP + 2 * i}, v{TP + 2 * i + 1}" for i in range(2)]
            ek = epi_k(par)
            o += ek[:2]
            o += [f"v_mfma_f32_16x16x16_bf16 {vr(SP)}, {vr(KB + 2 * (1 - par), 2)}, {vr(QB, 2)}, {vr(BP)}"]
            o += ek[2:]
            ev = [W(lgkm=["mr"], prior=["mr"])] + epi_v(par)
            o += ev[:3]
            o += [f"v_mfma_f32_16x16x16_bf16 {vr(SO_)}, {vr(KB + 2 * par, 2)}, {vr(QB, 2)}, {vr(BO)}"]
            o += ev[3:]
            e0, e1 = TP, TP + 1
            o += [f"v_max_f32 v{e0}, v{SP}, v{SP + 1}", f"v_max_f32 v{e1}, v{SP + 2}, v{SP + 3}",
                  f"v_max3_f32 v{e0}, v{SO_}, v{SO_ + 1}, v{e0}", f"v_max3_f32 v{e1}, v{SO_ + 2}, v{SO_ + 3}, v{e1}",
                  f"v_max_f32 v{mx}, v{e0}, v{e1}", f"v_max_f32 v{t2}, v{e0}, v{e1}",
                  f"v_permlane16_swap_b32 v{mx}, v{t2}",
                  f"v_max_f32 v{TP + 14}, v{mx}, v{t2}", f"v_max_f32 v{mx}, v{mx}, v{t2}",
                  f"v_permlane32_swap_b32 v{mx}, v{TP + 14}", f"v_max_f32 v{mx}, v{mx}, v{TP + 14}",
                  f"v_sub_f32 v{e0}, v{e0}, v{mx}", f"v_sub_f32 v{e1}, v{e1}, v{mx}",
                  f"v_mul_f32 v{e0}, v{e0}, v{C}", f"v_mul_f32 v{e1}, v{e1}, v{C}",
                  f"v_exp_f32 v{e0}, v{e0}", f"v_exp_f32 v{e1}, v{e1}",
                  f"v_cvt_pk_bf16_f32 v{e0}, v{e0}, v{e0}", f"v_cvt_pk_bf16_f32 v{e1}, v{e1}, v{e1}"]
            o += [f"v_and_b32 v{PB_ + 2 * (1 - par) + i}, v{MK + i}, v{e0 + i}" for i in range(2)]
            o += [f"v_and_b32 v{PB_ + 2 * par + i}, v{MK + 2 + i}, v{e0 + i}" for i in range(2)]
            o += [
                  f"v_mfma_f32_16x16x32_bf16 {vr(LL)}, {vr(ONES)}, {vr(PB_)}, 0",
                  f"v_mfma_f32_16x16x32_bf16 {vr(OO)}, {vr(VB)}, {vr(PB_)}, 0",
                  f"v_rcp_f32 v{LL}, v{LL}"]
            o += [f"v_mul_f32 v{OO + r}, v{OO + r}, v{LL}" for r in range(4)]
            o += [f"v_cvt_pk_bf16_f32 v{OO + i}, v{OO + 2 * i}, v{OO + 2 * i + 1}" for i in range(2)]
            o += [(f"buffer_store_dwordx2 {vr(OO, 2)}, v{vOA}, {WS}, {sOUT} offen{sc}", "out")]
            return o + self.adv(sOUT, None, 16384, 16)

        for i in range(9):
            p(f"v_mul_f32 v{CSQ + i}, {f32(-1 / 512)}, v{CSQ + i}")
        p("s_waitcnt vmcnt(0)", "s_barrier", self.first_reads(faddr, XR, NX, RA, 0),
          stats(0, PSA), "s_waitcnt lgkmcnt(0)", stats(1, PSA), epi_k(0), epi_v(0), self.stamp(),
          f"v_mov_b32 {vF}, -1", f"s_mov_b32 {sCNT}, 5", f"s_cmp_lg_u32 {sT2}, 0", "s_cbranch_scc1 L_qkv_slow_loop")

        def gap_of(x):
            t = str(x.text if isinstance(x, I) else x)
            if "permlane" in t or "v_mfma" in t:
                return 1
            if "v_rcp" in t:
                return 2
            return 0

        def body(name, par, sc, mode):
            s = self.seg(name)
            bb = []
            for k in range(16):
                bb += mm(par, k, vr(XR + 4 * (k % NX)))
            fixed, xs, nxt, bg = self.xreads(par, 3, faddr, XR, NX, RA, pair=2)
            pl = [(0, self.poll_issue(sPF))] + [(7, x) for x in self.publish(sc, local=False)]
            pl += [(13, x) for x in self.poll_check(sPF, f"qkv{par}", mode)]
            pl += [(13, x) for x in xdma(1 - par) + sdma(1 - par) + [f"s_add_u32 {sNEED}, {sNEED}, 1"]]
            main = [(1, x, gap_of(x)) for x in epilogue(1 - par, sc) + self.touch(16384)]
            stt = stats(par)
            pl += [(20, stt[0]), (20, stt[1])]
            st2 = [(24, W(lgkm=["st"], local=["st"]))] + [(24, x, gap_of(x)) for x in stt[3:]]
            self.stamp_at(fixed, bg)
            fixed.setdefault(bg, []).append(W(lgkm=["x15", "st"], vm=["dma"], local=["x15", "st", "dma"]))
            fixed[bg].append("s_barrier")
            s(f"s_cmp_eq_u32 {sNEED}, {sCNT}", f"s_cbranch_scc1 L_qkv_{mode}_evt{par}", f"L_qkv_{mode}_back{par}:")
            s(weave(bb, fixed, [xs + nxt, pl, main, st2], cap=3, name=name))
            return s

        for mode, sc in (("fast", ""), ("slow", " sc1")):
            self.seg("top")(".p2align 4", f"L_qkv_{mode}_loop:")
            b0 = body(f"qkv_{mode}_even", 0, sc, mode)
            b1 = body(f"qkv_{mode}_odd", 1, sc, mode)
            b1(f"s_cmp_lg_u32 {sNEED}, 36", f"s_cbranch_scc1 L_qkv_{mode}_loop")
            dr = self.seg(f"qkv_{mode}_drain")
            dr(self.publish(sc, local=False), setmask(7), epilogue(1, sc), self.final_publish(sc), self.stamp(), "s_endpgm")
            c = self.cold
            c(f"L_qkv_{mode}_evt1:", f"s_cmp_eq_u32 {sCNT}, 5", f"s_cbranch_scc0 L_qkv_{mode}_e19",
              [f"v_mov_b32 v{BP + r}, v{BN + r}" for r in range(4)], f"s_mov_b32 {sCNT}, 18", "s_nop 1",
              f"s_branch L_qkv_{mode}_back1",
              f"L_qkv_{mode}_e19:", f"v_mov_b32 v{vOA}, v{vOAK}", f"v_subrev_u32 {vF}, 1, {vF}", f"s_mov_b32 {sCNT}, 34", f"s_branch L_qkv_{mode}_back1")
            c(f"L_qkv_{mode}_evt0:", f"s_cmp_eq_u32 {sCNT}, 18", f"s_cbranch_scc0 L_qkv_{mode}_e18",
              srd(XS, P_WS, 2097152, X2_BASE), srd(SS, P_WS, 0x20000, S2_BASE), f"s_lshl_b32 {sROW}, {sG}, 18",
              f"v_mov_b32 {vTA}, {OOB:#x}", f"s_mov_b32 {sCNT}, 20", f"s_branch L_qkv_{mode}_back0",
              f"L_qkv_{mode}_e18:", f"s_cmp_eq_u32 {sCNT}, 20", f"s_cbranch_scc0 L_qkv_{mode}_e32",
              f"v_mov_b32 v{vOA}, {OOB:#x}", f"s_sub_u32 {sOUT}, {sOUT}, 16384",
              f"s_mov_b32 {sCNT}, 21", f"s_branch L_qkv_{mode}_back0",
              f"L_qkv_{mode}_e32:", f"s_add_u32 {sPF}, {sG}, 1", f"s_and_b32 {sPF}, {sPF}, 7",
              f"L_qkv_{mode}_nb:", f"s_sub_u32 {sTO}, {sTO}, 1", "s_cbranch_scc1 L_exit", self.hs_issue(sPF),
              "s_waitcnt vmcnt(0)", f"v_cmp_eq_u32 vcc, 0, {vP}", f"s_cbranch_vccnz L_qkv_{mode}_nb",
              f"s_lshl_b32 {sPF}, {sPF}, 11", f"s_add_u32 {sPF}, {sPF}, {F_SLOW}",
              f"v_and_b32 {vPA}, 31, {vL}", f"v_lshlrev_b32 {vPA}, 2, {vPA}", f"v_add_u32 {vPA}, {F_EXP}, {vPA}",
              f"s_mov_b32 {sCNT}, 0", f"s_branch L_qkv_{mode}_back0")
            self.finish([p, b0, b1, b0, b1, dr])

    def build(self):
        self.entry()
        self.qkv()
        self.wo()
        self.gu()
        self.dn()
        self.cold("L_exit:", "s_endpgm")
        self.layout.append(self.cold)
        for sg in self.layout:
            check_order(sg)
        for t in self.traces:
            resolve_waits(t)
        for t in self.traces:
            fix_hazards(t)
        fix_hazards([self.cold])
        ref = open(f"cdna_kernels/{NAME}.s.ref").read().split("\n") if os.path.exists(
            f"cdna_kernels/{NAME}.s.ref") else []
        hdr = [l for l in ref if l.startswith(";") and "@launch" not in l and "Override" not in l and "grid=ceil" not in l]
        out = "\n".join(hdr) + ("\n" if hdr else "")
        out += "; @launch grid=(256,1,1) block=(256,1,1) lds=163840\n"
        out += f'.amdgcn_target "amdgcn-amd-amdhsa--gfx950"\n.text\n.globl {NAME}_kernel\n.p2align 8\n'
        out += f".type {NAME}_kernel,@function\n{NAME}_kernel:\n"
        out += emit(self.layout)
        out += f""".section .rodata,"a"
.p2align 6
.amdhsa_kernel {NAME}_kernel
  .amdhsa_next_free_vgpr 512
  .amdhsa_next_free_sgpr 96
  .amdhsa_accum_offset 256
  .amdhsa_group_segment_fixed_size 0
  .amdhsa_kernarg_size 80
  .amdhsa_user_sgpr_count 2
  .amdhsa_user_sgpr_kernarg_segment_ptr 1
  .amdhsa_system_sgpr_workgroup_id_x 1
.end_amdhsa_kernel
"""
        return out


if __name__ == "__main__":
    cfg = dict(CFG)
    outp = None
    for a in sys.argv[1:]:
        if "=" in a:
            k, v = a.split("=")
            cfg[k] = eval(v)
        else:
            outp = a
    g = Gen(cfg)
    txt = g.build()
    open(outp or f"cdna_kernels/{NAME}.s", "w").write(txt)
    if cfg.get("verbose"):
        print("\n".join(weave.log))
        print("\n".join(fix_hazards.log))
```

```python
import sys, os, math, struct
sys.path.insert(0, os.path.dirname(os.path.abspath(__file__)))
from asmlib import *

NAME = "interleave_layers__sliding_local_dilated__glu_gated_reglu__prompt"

CFG = dict(alias=True, stamps=False, force_slow=False, wnt=False, touch=True, late_alarm=False, sleep=1)

WS_BYTES = 268435456
O_BASE, O_GS = 0x0100000, 0x80000
X1_BASE, X1_GS = 0x0800000, 0x100000
H_BASE, H_GS = 0x1000000, 0x200000
X2_BASE = 0x2000000
S2_BASE = 0x2200000
S0_BASE, S0_GS = 0x2300000, 0x20000
ST_BASE = 0x3000000
F_QKV, F_WO, F_GU, F_DN, F_EXP, F_ALARM, F_SLOW = 0, 128, 256, 512, 640, 896, 1024
OOB = 0x80000000
XBUF = 17408
REG = 4352

sG, sR, sW, sPAT, sTO = "s3", "s33", "s34", "s35", "s56"
WS, WSRD, XS, SS, DBG = "s[4:7]", "s[8:11]", "s[12:15]", "s[16:19]", "s[20:23]"
P_X, P_QKV, P_WO, P_G, P_U, P_D, P_OUT, P_DBG, P_WS = 36, 38, 40, 44, 46, 48, 50, 52, 54
sC, sNEED, sIN, sOUT, sCNT, sM0, sT0, sT1, sFB, sROW, sST, sEVT, sPF, sWO = (f"s{i}" for i in range(57, 71))
sSTAMP = "s72"
sK80 = "s73"
sT2, sT3 = "s74", "s75"
sINB, sOUTB = "s76", "s77"
sM1 = "s78"
sFB0 = "s79"

vL, vT, vG, vL16, vP, vPA, vFA, vF, vTMP, vTMP2, vSTA, vTMP3 = (f"v{i}" for i in range(0, 12))
ONES = 12
vTA, vTS, vDUM = "v250", "v251", "v252"


def f32(x):
    return "0x%08x" % struct.unpack("<I", struct.pack("<f", x))[0]


def vr(b, n=4):
    return f"v[{b}:{b + n - 1}]"


def ar(b, n=4):
    return f"a[{b}:{b + n - 1}]"


def srd(dst, ptr, size, add=0):
    b = int(dst[2:dst.index(":")])
    o = []
    if add:
        o += [f"s_add_u32 s{b}, s{ptr}, {add}", f"s_addc_u32 s{b + 1}, s{ptr + 1}, 0"]
    else:
        o += [f"s_mov_b32 s{b}, s{ptr}", f"s_mov_b32 s{b + 1}, s{ptr + 1}"]
    o += [f"s_mov_b32 s{b + 2}, {size}", f"s_mov_b32 s{b + 3}, 0x20000"]
    return o


class Gen:
    def __init__(self, cfg):
        self.cfg = cfg
        self.layout = []
        self.cold = Seg("cold")
        self.traces = []
        self.uid = 0

    def seg(self, name):
        s = Seg(name)
        self.layout.append(s)
        return s

    def lab(self, p):
        self.uid += 1
        return f"L_{p}_{self.uid}"

    def stamp(self):
        return self.stamp_a() + (["s_waitcnt lgkmcnt(0)"] if self.cfg["stamps"] else []) + self.stamp_b()

    def probe_mark(self, name):
        pr = self.cfg.get("probe")
        if pr and pr[0] == name:
            return ["s_memrealtime s[86:87]", "s_waitcnt lgkmcnt(0)"]
        return []

    def probe_end(self, role):
        pr = self.cfg.get("probe")
        if not pr or not pr[0].startswith(role):
            return []
        l = self.lab("probe")
        pre = ["s_sleep 100", "s_sleep 100", "buffer_wbl2 sc1", "s_waitcnt vmcnt(0)"] if self.cfg.get("probe_wb") else []
        return pre + ["s_sub_u32 s86, s86, s84", f"s_mul_i32 s86, s86, {pr[1]}", f"s_add_u32 s86, s86, {pr[2]}", f"{l}:",
                "s_sleep 2", "s_memrealtime s[88:89]", "s_waitcnt lgkmcnt(0)", "s_sub_u32 s88, s88, s84",
                "s_cmp_lt_u32 s88, s86", f"s_cbranch_scc1 {l}"]

    def stamp_a(self):
        return ["s_memrealtime s[80:81]"] if self.cfg["stamps"] else []

    def stamp_b(self):
        if not self.cfg["stamps"]:
            return []
        return [f"v_mov_b32 {vTMP3}, s80", f"buffer_store_dword {vTMP3}, {vSTA}, {WS}, {sSTAMP} offen",
                f"s_add_u32 {sSTAMP}, {sSTAMP}, 4"]

    def stamp_at(self, fixed, bg):
        if self.cfg["stamps"]:
            fixed.setdefault(bg - 8, []).extend(self.stamp_a())
            fixed.setdefault(bg, []).append("s_waitcnt lgkmcnt(0)")
            fixed.setdefault(bg + 1, []).extend(self.stamp_b())

    def poll_issue(self, soff):
        return (f"buffer_load_dword {vP}, {vPA}, {WS}, {soff} offen sc1", "poll")

    def poll_check(self, soff, key, mode, publish=False):
        sp, ret = f"L_spin_{key}_{mode}", f"L_ret_{key}_{mode}"
        sc = " sc1" if mode == "slow" else ""
        c = self.cold
        c(f"{sp}:")
        if publish:
            c(f"v_add_u32 {vTMP}, 1, {vF}", "s_waitcnt vmcnt(0)", f"buffer_store_dword {vTMP}, {vFA}, {WS}, {sFB} offen{sc}")
        c(f"{sp}_l:", f"s_sub_u32 {sTO}, {sTO}, 1", "s_cbranch_scc1 L_exit")
        if self.cfg["sleep"]:
            c(f"s_sleep {self.cfg['sleep']}")
        c(f"buffer_load_dword {vP}, {vPA}, {WS}, {soff} offen sc1", "s_waitcnt vmcnt(0)",
          f"v_cmp_gt_i32 vcc, {sNEED}, {vP}", f"s_cbranch_vccz {ret}")
        if mode != "slow":
            c(f"s_and_b32 {sT0}, {sTO}, 15", f"s_cbranch_scc1 {sp}_l", f"v_mov_b32 {vTMP}, {F_ALARM}",
              f"buffer_load_dword {vP}, {vTMP}, {WS}, {sFB} offen sc1", "s_waitcnt vmcnt(0)",
              f"v_cmp_ne_u32 vcc, 0, {vP}", f"s_cbranch_vccnz {sp}_l",
              "buffer_wbl2 sc1", "s_waitcnt vmcnt(0)", self.go_slow(),
              f"buffer_store_dword {vF}, {vFA}, {WS}, {sFB} offen sc1")
        c(f"s_branch L_spin_{key}_slow" if mode == "fast" else f"s_branch {sp}_l")
        return [W(vm=["poll"]), f"v_cmp_gt_i32 vcc, {sNEED}, {vP}", f"s_cbranch_vccnz {sp}", f"{ret}:"]

    def go_slow(self):
        return [f"s_add_u32 {sFB}, {sFB0}, {F_SLOW}", f"s_mov_b32 {sPF}, {sFB}", f"s_mov_b32 {sT2}, 1"]

    def hs_issue(self, grp=sG):
        return [f"s_lshl_b32 {sT0}, {grp}, 2", f"v_mov_b32 {vTMP}, {sT0}",
                (f"buffer_load_dword {vP}, {vTMP}, {DBG}, 0 offen sc1", "poll")]

    def hs_check(self):
        sp, ret, mm, ok = self.lab("hs"), self.lab("hsret"), self.lab("hsmm"), self.lab("hsok")
        self.cold(f"{sp}:", f"s_sub_u32 {sTO}, {sTO}, 1", "s_cbranch_scc1 L_exit", "s_sleep 1", self.hs_issue(),
                  "s_waitcnt vmcnt(0)", f"v_cmp_eq_u32 vcc, 0, {vP}", f"s_cbranch_vccnz {sp}", f"s_branch {ret}",
                  f"{mm}:")
        if self.cfg["late_alarm"]:
            self.cold(["s_sleep 127"] * 6)
        self.cold(f"s_mov_b32 {sT0}, {F_ALARM}", self.lane0_addr(vTMP, sT0), f"v_mov_b32 {vTMP2}, 0",
                  f"buffer_store_dword {vTMP2}, {vTMP}, {WS}, {sFB0} offen sc1", "s_waitcnt vmcnt(0)", self.go_slow(),
                  f"s_branch {ok}")
        o = [W(vm=["poll"]), f"v_cmp_eq_u32 vcc, 0, {vP}", f"s_cbranch_vccnz {sp}", f"{ret}:",
             f"v_cmp_ne_u32 vcc, {sPAT}, {vP}", f"s_cbranch_vccnz {mm}"]
        if self.cfg["force_slow"] is not False:
            o += [f"s_cmp_eq_u32 {sR}, {int(self.cfg['force_slow'])}", f"s_cbranch_scc1 {mm}"]
        return o + [f"{ok}:"]

    def publish(self, sc, local=True):
        return [W(vm=["out"], local=["out"]) if local else W(vm=["out"], prior=["out"]), f"v_add_u32 {vF}, 1, {vF}",
                (f"buffer_store_dword {vF}, {vFA}, {WS}, {sFB} offen{sc}", "flag")]

    def final_publish(self, sc):
        return [f"v_add_u32 {vF}, 1, {vF}", "s_waitcnt vmcnt(0)", f"buffer_store_dword {vF}, {vFA}, {WS}, {sFB} offen{sc}"]

    def touch(self, stride):
        if not self.cfg["touch"]:
            return []
        return [(f"buffer_load_dword {vDUM}, {vTA}, {WS}, 0 offen sc1", "touch"), f"v_add_u32 {vTA}, {stride}, {vTA}"]

    def keep_lanes(self, reg, n):
        return [f"v_mov_b32 {vTMP2}, {OOB:#x}", f"v_cmp_gt_u32 vcc, {n}, {vL}", f"v_cndmask_b32 {reg}, {vTMP2}, {reg}, vcc"]

    def lane0_addr(self, dst, sreg):
        return [f"v_mov_b32 {dst}, {sreg}", f"v_mov_b32 {vTMP2}, {OOB:#x}", f"v_cmp_eq_u32 vcc, 0, {vL}",
                f"v_cndmask_b32 {dst}, {vTMP2}, {dst}, vcc"]

    def adv(self, s, base, step, nrec):
        if self.cfg["alias"]:
            return [f"s_add_u32 {s}, {s}, {step}", f"s_and_b32 {s}, {s}, {~(step * 16) & 0xffffffff:#x}"]
        return [f"s_add_u32 {s}, {s}, {step}"]

    def entry(self):
        s = self.seg("entry")
        if self.cfg.get("probe_first"):
            s("s_memrealtime s[84:85]")
        s(f"s_cmp_ge_u32 s2, 256", "s_cbranch_scc1 L_exit",
          "s_load_dwordx16 s[36:51], s[0:1], 0", "s_load_dwordx4 s[52:55], s[0:1], 64",
          f"s_and_b32 {sG}, s2, 7", f"s_lshr_b32 {sR}, s2, 3",
          "v_lshrrev_b32 v1, 6, v0", f"v_and_b32 {vL}, 63, v0", f"v_readfirstlane_b32 {sW}, v1",
          f"s_getreg_b32 {sPAT}, hwreg(HW_REG_XCC_ID)", f"s_and_b32 {sPAT}, {sPAT}, 15", f"s_or_b32 {sPAT}, {sPAT}, 0x80",
          f"s_mov_b32 {sTO}, 200000", f"s_mov_b32 {sT2}, 0", f"v_mov_b32 {vF}, 0",
          f"v_and_b32 {vT}, 15, {vL}", f"v_lshrrev_b32 {vG}, 4, {vL}", f"v_lshlrev_b32 {vL16}, 4, {vL}",
          f"s_lshl_b32 {sFB}, {sG}, 11", f"s_mov_b32 {sFB0}, {sFB}", f"s_mov_b32 {sPF}, {sFB}")
        for i in range(4):
            s(f"v_mov_b32 v{ONES + i}, 0x3f803f80")
        if self.cfg.get("probe") and not self.cfg.get("probe_first"):
            s("s_memrealtime s[84:85]")
        s("s_waitcnt lgkmcnt(0)", srd(WS, P_WS, WS_BYTES), srd(DBG, P_DBG, 256))
        if self.cfg["stamps"]:
            s(f"s_lshl_b32 {sT0}, s2, 2", f"s_add_u32 {sT0}, {sT0}, {sW}", f"s_lshl_b32 {sT0}, {sT0}, 8",
              f"s_add_u32 {sSTAMP}, {sT0}, {ST_BASE:#x}", f"s_mov_b32 {sT0}, 0", self.lane0_addr(vSTA, sT0), self.stamp())
        s(f"s_cmp_lt_u32 {sR}, 8", "s_cbranch_scc1 L_qkv", f"s_cmp_lt_u32 {sR}, 10", "s_cbranch_scc1 L_wo",
          f"s_cmp_lt_u32 {sR}, 24", "s_cbranch_scc1 L_gu", "s_branch L_dn")
        self.entry_seg = s
        self.wnt = " nt" if self.cfg["wnt"] else ""

    def xreads(self, par, nt, faddr, XR, NX, RA, nk=16, pair=1):
        fixed, st = {}, []

        def rd(p, s):
            a, off = faddr(p, s)
            r = XR + 4 * (s % NX)
            return (f"ds_read_b128 {vr(r)}, {a} offset:{off}", f"x{s}")
        bk = nk - RA
        for s in range(RA, nk):
            k = min(s - RA, bk - 2)
            st.append((nt * k, rd(par, s)))
        for s in range(0, bk, pair):
            e = min(s + pair - 1, nk - 1)
            t = f"x{e}"
            fixed.setdefault(nt * s, []).append(W(lgkm=[t], prior=[t]) if e < RA else W(lgkm=[t], local=[t]))
        nxt = [(nt * (bk + s), rd(1 - par, s)) for s in range(RA)]
        return fixed, st, nxt, nt * bk

    def first_reads(self, faddr, XR, NX, RA, par):
        o = []
        for s in range(RA):
            a, off = faddr(par, s)
            o.append((f"ds_read_b128 {vr(XR + 4 * (s % NX))}, {a} offset:{off}", f"x{s}"))
        return o

    def finish(self, trace):
        self.traces.append([self.entry_seg] + trace)

    def gu(self):
        vW, vRG, vRC, vD4, vD16, vSA, vS, vOA = 16, 20, 21, 22, 23, 24, 26, 28
        CS, ACC, XR, TP, HB = 32, 48, 80, 112, 128
        NX, RA, D, NS, RING = 8, 4, 3, 4, 40960
        p = self.seg("gu_pro")
        p("L_gu:", f"s_sub_u32 {sC}, {sR}, 10")
        p(f"s_cmp_lt_u32 {sW}, 2", f"s_cselect_b32 s8, s{P_G}, s{P_U}", f"s_cselect_b32 s9, s{P_G + 1}, s{P_U + 1}",
          f"s_mov_b32 s10, {512 * 3584}", "s_mov_b32 s11, 0x20000")
        p(f"v_lshrrev_b32 {vTMP}, 3, {vL}", f"v_mul_u32_u24 v{vW}, 3584, {vTMP}",
          f"v_lshlrev_b32 {vTMP}, 1, {vTMP}", f"v_and_b32 {vTMP}, 4, {vTMP}", f"v_and_b32 {vTMP2}, 7, {vL}",
          f"v_xor_b32 {vTMP}, {vTMP}, {vTMP2}", f"v_lshl_add_u32 v{vW}, {vTMP}, 4, v{vW}",
          f"s_and_b32 {sT0}, {sW}, 1", f"s_lshl_b32 {sT0}, {sT0}, 7", f"s_lshl_b32 {sT1}, {sC}, 8",
          f"s_add_u32 {sT0}, {sT0}, {sT1}", f"v_add_u32 v{vW}, {sT0}, v{vW}")
        for q in range(1, 4):
            p(f"v_add_u32 v{vW + q}, {q * (8 * 3584 - 1024)}, v{vW}")
        p(f"s_lshl_b32 {sM0}, {sW}, 12", f"s_add_u32 {sM0}, {sM0}, {RING}", f"s_mov_b32 {sWO}, 0")

        def wstage(s):
            o = [f"s_add_u32 m0, {sM0}, {(s % NS) * 16384}", "s_nop 0"]
            o += [(f"buffer_load_dwordx4 v{vW + q}, {WSRD}, {sWO} offen offset:{q * 1024}{self.wnt} lds", f"w{s}") for q in range(4)]
            o += [f"s_add_u32 {sWO}, {sWO}, {32 * 3584}"]
            return o
        p([wstage(s) for s in range(D)])
        p(f"v_lshrrev_b32 {vTMP}, 2, {vT}", f"v_lshl_add_u32 v{vRG}, {vG}, 3, {vTMP}", f"v_lshlrev_b32 v{vRG}, 7, v{vRG}",
          f"v_lshrrev_b32 {vTMP}, 1, {vTMP}", f"s_and_b32 {sT0}, {sW}, 1", f"v_xor_b32 {vTMP}, {sT0}, {vTMP}",
          f"v_lshl_add_u32 v{vRG}, {vTMP}, 6, v{vRG}", f"v_and_b32 {vTMP}, 3, {vL}",
          f"v_lshl_add_u32 v{vRG}, {vTMP}, 4, v{vRG}", f"s_lshr_b32 {sT0}, {sW}, 1", f"s_lshl_b32 {sT0}, {sT0}, 12",
          f"s_add_u32 {sT0}, {sT0}, {RING}", f"v_add_u32 v{vRG}, {sT0}, v{vRG}")
        p(f"s_mul_i32 {sT0}, {sW}, {REG}", f"v_lshl_add_u32 v{vD4}, {vL}, 2, {sT0}", f"v_add_u32 v{vD16}, {sT0}, {vL16}",
          f"s_mov_b32 {sM1}, {sT0}",
          f"v_mul_u32_u24 v{vSA}, {REG}, {vG}", f"v_lshl_add_u32 v{vSA}, {vT}, 2, v{vSA}", f"v_add_u32 v{vSA + 1}, {XBUF}, v{vSA}",
          f"v_min_u32 {vPA}, 7, {vL}", f"v_lshlrev_b32 {vPA}, 2, {vPA}", f"v_add_u32 {vPA}, {F_WO}, {vPA}",
          f"s_lshl_b32 {sT0}, {sC}, 2", f"s_add_u32 {sT0}, {sT0}, {sW}", f"s_lshl_b32 {sT1}, {sT0}, 10",
          f"v_add_u32 v{vOA}, {sT1}, {vL16}", f"s_lshl_b32 {sT0}, {sT0}, 2", f"s_add_u32 {sT0}, {sT0}, {F_GU}",
          self.lane0_addr(vFA, sT0),
          f"s_mul_i32 {sIN}, {sG}, {X1_GS:#x}", f"s_add_u32 {sIN}, {sIN}, {X1_BASE:#x}",
          f"s_mul_i32 {sOUT}, {sG}, {H_GS:#x}", f"s_add_u32 {sOUT}, {sOUT}, {H_BASE:#x}", f"s_mov_b32 {sNEED}, 1")
        p(f"s_lshl_b32 {sT0}, {sC}, 2", f"s_add_u32 {sT0}, {sT0}, {sW}", f"s_mul_i32 {sT3}, {sT0}, 3", f"s_sub_u32 {sT3}, {sT3}, 8",
          f"v_add_u32 {vTMP}, {sT3}, {vL}", f"s_lshl_b32 {sT3}, {sG}, 18", f"s_add_u32 {sT3}, {sT3}, {X2_BASE:#x}",
          f"v_lshl_add_u32 {vTA}, {vTMP}, 7, {sT3}", f"v_mov_b32 {vTS}, 16384",
          f"s_lshl_b32 {sT3}, {sG}, 14", f"s_add_u32 {sT3}, {sT3}, {S2_BASE - 16384:#x}",
          f"v_lshl_add_u32 {vTMP3}, {vTMP}, 7, {sT3}", f"v_mov_b32 {vTMP2}, 1024", f"v_cmp_lt_u32 vcc, 127, {vTMP}",
          f"v_cndmask_b32 {vTA}, {vTA}, {vTMP3}, vcc", f"v_cndmask_b32 {vTS}, {vTS}, {vTMP2}, vcc",
          f"v_mov_b32 {vTMP2}, {OOB:#x}", f"v_cmp_lt_u32 vcc, 135, {vTMP}", f"v_cndmask_b32 {vTA}, {vTA}, {vTMP2}, vcc",
          f"s_lshl_b32 {sT0}, {sT0}, 10", f"s_add_u32 {sT0}, {sT0}, {sOUT}", f"v_lshl_add_u32 {vTMP3}, {vL}, 7, {sT0}",
          f"v_mov_b32 {vTMP2}, 65536", f"v_cmp_gt_u32 vcc, 8, {vL}",
          f"v_cndmask_b32 {vTA}, {vTA}, {vTMP3}, vcc", f"v_cndmask_b32 {vTS}, {vTS}, {vTMP2}, vcc", self.keep_lanes(vTA, 11))
        for s in range(16):
            p(W(vm=[f"w{s}"]), "s_barrier")
            if s + D < 16:
                p(wstage(s + D))
            if s == 13:
                p(self.touch(vTS), self.hs_issue())
            for t in range(4):
                for h in range(2):
                    off = (s % NS) * 16384 + (t // 2) * 8192 + (t % 2) * 8 + h * 512
                    p(f"ds_read_b64_tr_b16 {ar(16 * s + 4 * t + 2 * h, 2)}, v{vRG} offset:{off}")
            p("s_waitcnt lgkmcnt(0)")
            for t in range(4):
                c = "0" if s == 0 else vr(CS + 4 * t)
                p(f"v_mfma_f32_16x16x32_bf16 {vr(CS + 4 * t)}, {ar(16 * s + 4 * t)}, {vr(ONES)}, {c}")
        p(self.stamp(), self.probe_mark("gu_w"), self.hs_check())
        for i in range(16):
            p(f"v_mul_f32 v{CS + i}, {f32(-1 / 512)}, v{CS + i}")

        faddr = lambda par, s: (vL16, par * XBUF + (s // 4) * REG + 256 + (s % 4) * 1024)

        def dma(par):
            o = [f"s_add_u32 m0, {sM1}, {par * XBUF}", f"s_add_u32 {sNEED}, {sNEED}, 1",
                 (f"buffer_load_dword v{vD4}, {WS}, {sIN} offen sc1 lds", "dma")]
            o += [(f"buffer_load_dwordx4 v{vD16}, {WS}, {sIN} offen offset:{256 + 1024 * q} sc1 lds", "dma") for q in range(4)]
            return o + self.adv(sIN, None, 32768, 16)
        p(self.poll_issue(sFB), self.poll_check(sFB, "gu", "pro"), dma(0), "s_waitcnt vmcnt(0)", "s_barrier",
          self.first_reads(faddr, XR, NX, RA, 0), self.stamp(), self.probe_mark("gu_start"),
          f"s_mov_b32 {sCNT}, 15", f"s_cmp_lg_u32 {sT2}, 0", "s_cbranch_scc1 L_gu_slow")

        def epilogue(par, sc):
            a = ACC + 16 * par
            o = []
            for t in range(2):
                for r in range(4):
                    o.append(f"v_fma_f32 v{TP + 4 * t + r}, v{vS + par}, v{CS + 4 * t + r}, v{a + 4 * t + r}")
            for t in range(2):
                for r in range(4):
                    o.append(f"v_fma_f32 v{TP + 8 + 4 * t + r}, v{vS + par}, v{CS + 8 + 4 * t + r}, v{a + 8 + 4 * t + r}")
                    o.append(f"v_max_f32 v{TP + 4 * t + r}, 0, v{TP + 4 * t + r}")
            for i in range(8):
                o.append(f"v_mul_f32 v{TP + i}, v{TP + i}, v{TP + 8 + i}")
            for i in range(4):
                o.append(f"v_cvt_pk_bf16_f32 v{HB + i}, v{TP + 2 * i}, v{TP + 2 * i + 1}")
            o.append((f"buffer_store_dwordx4 {vr(HB)}, v{vOA}, {WS}, {sOUT} offen{sc}", "out"))
            return o

        def stats(par):
            a, b = TP + 16 + 8, TP + 17 + 8
            return [(f"ds_read2_b32 v[{a}:{b}], v{vSA + par} offset0:0 offset1:32", "st"), W(lgkm=["st"]),
                    f"v_add_f32 v{a}, v{a}, v{b}", f"v_mov_b32 v{b}, v{a}", f"v_permlane16_swap_b32 v{a}, v{b}",
                    f"v_add_f32 v{a}, v{a}, v{b}", f"v_mov_b32 v{b}, v{a}", f"v_permlane32_swap_b32 v{a}, v{b}",
                    f"v_add_f32 v{vS + par}, v{a}, v{b}"]

        def body(key, mode, par, epi, pre):
            sc = " sc1" if mode == "slow" else ""
            s = self.seg(f"gu_{key}_{mode}")
            bb = []
            for k in range(16):
                for t in range(4):
                    d = vr(ACC + 16 * par + 4 * t)
                    bb.append(f"v_mfma_f32_16x16x32_bf16 {d}, {ar(16 * k + 4 * t)}, {vr(XR + 4 * (k % NX))}, {'0' if k == 0 else d}")
            fixed, xs, nxt, bg = self.xreads(par, 4, faddr, XR, NX, RA, pair=self.cfg.get("gu_pair", 2))
            main, pl = [], []
            if pre:
                pl.append((0, self.poll_issue(sFB)))
                pl += [(17, x) for x in self.poll_check(sFB, "gu" + key, mode)]
                pl += [(17, x) for x in dma(1 - par)]
            if epi:
                main += [(1, x) for x in epilogue(1 - par, sc)]
                main += [(1, x) for x in self.adv(sOUT, None, 65536, 16)]
            if pre:
                main += [(28, x) for x in self.touch(vTS)]
            stt = stats(par)
            st2 = [(34, stt[0])] + [(39, stt[1])] + [(39, x, 2 if i in (2, 5) else 0) for i, x in enumerate(stt[2:])]
            fl = [(53, x) for x in self.publish(sc)] if epi else []
            dm = ["dma"] if pre else []
            self.stamp_at(fixed, bg)
            fixed.setdefault(bg, []).append(W(lgkm=["x15", "st"], vm=dm, local=["x15", "st"] + dm))
            if pre:
                fixed[bg].append("s_barrier")
                xs = xs + nxt
            s(weave(bb, fixed, [xs, pl, main, fl, st2], name=s.name))
            return s

        for mode, sc in (("fast", ""), ("slow", " sc1")):
            if mode == "slow":
                self.seg("gu_slow_lab")("L_gu_slow:")
            b0 = body("b0", mode, 0, False, True)
            self.seg("top")(".p2align 4", f"L_gu_{mode}_loop:")
            b1 = body("odd", mode, 1, True, True)
            b2 = body("even", mode, 0, True, True)
            b2(f"s_sub_u32 {sCNT}, {sCNT}, 1", f"s_cmp_eq_u32 {sCNT}, 8", f"s_cbranch_scc1 L_gu_{mode}_sw",
               f"s_cmp_lg_u32 {sCNT}, 0", f"s_cbranch_scc1 L_gu_{mode}_loop")
            self.cold(f"L_gu_{mode}_sw:", f"v_mov_b32 {vTA}, {OOB:#x}", f"s_branch L_gu_{mode}_loop")
            b3 = body("last", mode, 1, True, False)
            dr = self.seg(f"gu_{mode}_drain")
            dr(epilogue(1, sc), self.final_publish(sc), self.stamp(), self.probe_mark("gu_end"), self.probe_end("gu"), "s_endpgm")
            self.finish([p, b0, b1, b2, b1, b2, b3, dr])

    def wo(self):
        vW, vRP, vD16, vRA, vOA, vSO = 16, 20, 22, 23, 24, 25
        ACC, XR, RS, OB, TP = 48, 80, 112, 120, 128
        NX, RA, D, NS, RING = 8, 4, 3, 4, 40960
        p = self.seg("wo_pro")
        p("L_wo:", f"s_sub_u32 {sC}, {sR}, 8", srd(WSRD, P_WO, 512 * 1024),
          f"s_lshl_b32 {sC}, {sC}, 2", f"s_add_u32 {sC}, {sC}, {sW}")
        p(f"v_lshrrev_b32 {vTMP}, 3, {vL}", f"v_lshlrev_b32 v{vW}, 10, {vTMP}",
          f"v_lshlrev_b32 {vTMP}, 1, {vTMP}", f"v_and_b32 {vTMP}, 4, {vTMP}", f"v_and_b32 {vTMP2}, 7, {vL}",
          f"v_xor_b32 {vTMP}, {vTMP}, {vTMP2}", f"v_lshl_add_u32 v{vW}, {vTMP}, 4, v{vW}",
          f"s_lshl_b32 {sT0}, {sC}, 7", f"v_add_u32 v{vW}, {sT0}, v{vW}")
        for q in range(1, 4):
            p(f"v_add_u32 v{vW + q}, {q * (8192 - 1024)}, v{vW}")
        p(f"s_lshl_b32 {sM0}, {sW}, 14", f"s_add_u32 {sM0}, {sM0}, {RING}", f"s_mov_b32 {sWO}, 0")

        def wstage(s):
            o = [f"s_add_u32 m0, {sM0}, {(s % NS) * 4096}", "s_nop 0"]
            o += [(f"buffer_load_dwordx4 v{vW + q}, {WSRD}, {sWO} offen offset:{q * 1024}{self.wnt} lds", f"w{s}") for q in range(4)]
            o += [f"s_add_u32 {sWO}, {sWO}, 32768"]
            return o
        p([wstage(s) for s in range(D)])
        p(f"v_lshrrev_b32 {vTMP}, 2, {vT}", f"v_lshl_add_u32 v{vRP}, {vG}, 3, {vTMP}", f"v_lshlrev_b32 v{vRP}, 7, v{vRP}",
          f"v_lshrrev_b32 {vTMP}, 1, {vTMP}", f"v_lshl_add_u32 v{vRP}, {vTMP}, 6, v{vRP}", f"v_and_b32 {vTMP}, 3, {vL}",
          f"v_lshl_add_u32 v{vRP}, {vTMP}, 4, v{vRP}", f"v_add_u32 v{vRP}, {sM0}, v{vRP}", f"v_xor_b32 v{vRP + 1}, 64, v{vRP}")
        p(f"s_lshl_b32 {sM1}, {sW}, 12", f"v_add_u32 v{vD16}, {sM1}, {vL16}",
          f"v_lshlrev_b32 v{vRA}, 10, {vT}", f"v_lshl_add_u32 v{vRA}, {vG}, 4, v{vRA}", f"s_lshl_b32 {sT0}, {sC}, 7",
          f"v_add_u32 v{vRA}, {sT0}, v{vRA}",
          f"s_lshr_b32 {sT0}, {sC}, 1", f"s_mul_i32 {sT0}, {sT0}, {REG}", f"s_and_b32 {sT1}, {sC}, 1",
          f"s_lshl_b32 {sT3}, {sT1}, 11", f"s_add_u32 {sT3}, {sT3}, {sT0}", f"v_add_u32 v{vOA}, {sT3}, {vL16}",
          f"s_lshl_b32 {sT3}, {sT1}, 7", f"s_add_u32 {sT3}, {sT3}, {sT0}", f"v_lshl_add_u32 v{vSO}, {vL}, 2, {sT3}",
          f"v_mov_b32 {vTMP2}, {OOB:#x}", f"v_cmp_gt_u32 vcc, 32, {vL}", f"v_cndmask_b32 v{vSO}, {vTMP2}, v{vSO}, vcc",
          f"v_and_b32 {vPA}, 31, {vL}", f"v_lshlrev_b32 {vPA}, 2, {vPA}",
          f"s_lshl_b32 {sT1}, {sT1}, 11", f"s_add_u32 {sT1}, {sT1}, {sT0}", f"s_add_u32 {sT1}, {sT1}, 256",
          f"v_lshl_add_u32 {vTA}, {vL}, 7, {sT1}", f"v_mov_b32 {vTMP}, {sT3}", f"v_cmp_eq_u32 vcc, 16, {vL}",
          f"v_cndmask_b32 {vTA}, {vTA}, {vTMP}, vcc",
          f"s_lshl_b32 {sT0}, {sC}, 2", f"s_add_u32 {sT0}, {sT0}, {F_WO}", self.lane0_addr(vFA, sT0),
          f"s_mul_i32 {sIN}, {sG}, {O_GS:#x}", f"s_add_u32 {sIN}, {sIN}, {O_BASE:#x}",
          f"s_mul_i32 {sOUT}, {sG}, {X1_GS:#x}", f"s_add_u32 {sOUT}, {sOUT}, {X1_BASE:#x}", f"s_mov_b32 {sNEED}, 1",
          f"s_lshl_b32 {sROW}, {sG}, 18", srd(XS, P_X, 2097152),
          f"v_add_u32 {vTA}, {sOUT}, {vTA}", self.keep_lanes(vTA, 17))
        for s in range(16):
            p(W(vm=[f"w{s}"]))
            if s + D < 16:
                p(wstage(s + D))
            if s == 13:
                p(self.touch(32768), self.hs_issue())
            for t in range(4):
                for h in range(2):
                    off = (s % NS) * 4096 + (t % 2) * 8 + h * 512
                    p(f"ds_read_b64_tr_b16 {ar(16 * s + 4 * t + 2 * h, 2)}, v{vRP + t // 2} offset:{off}")
            p("s_waitcnt lgkmcnt(0)")
        p(self.stamp(), self.hs_check())

        faddr = lambda par, s: (vL16, par * XBUF + s * 1024)

        def dma(par):
            o = [f"s_add_u32 m0, {sM1}, {par * XBUF}", f"s_add_u32 {sNEED}, {sNEED}, 1"]
            o += [(f"buffer_load_dwordx4 {vr(RS + 4 * h)}, v{vRA}, {XS}, {sROW} offen offset:{64 * h} sc1", "res") for h in range(2)]
            o += [(f"buffer_load_dwordx4 v{vD16}, {WS}, {sIN} offen offset:{1024 * q} sc1 lds", "dma") for q in range(4)]
            o += self.adv(sIN, None, 16384, 16)
            o += [f"s_add_u32 {sROW}, {sROW}, 16384", f"s_and_b32 {sROW}, {sROW}, 0x1fffff"]
            return o

        def cinit(par):
            a = ACC + 16 * par
            o = [W(vm=["res"], local=["res"])]
            for i in range(8):
                o.append(f"v_lshlrev_b32 v{a + 2 * i}, 16, v{RS + i}")
                o.append(f"v_and_b32 v{a + 2 * i + 1}, 0xffff0000, v{RS + i}")
            return o
        p(self.poll_issue(sFB), self.poll_check(sFB, "wo", "pro"), dma(0), cinit(0), "s_waitcnt vmcnt(0)", "s_barrier",
          self.first_reads(faddr, XR, NX, RA, 0), self.stamp(),
          f"s_mov_b32 {sCNT}, 15", f"s_cmp_lg_u32 {sT2}, 0", "s_cbranch_scc1 L_wo_slow")

        def epilogue(par, sc):
            a = ACC + 16 * par
            o = []
            for h in range(2):
                for i in range(4):
                    o.append(f"v_cvt_pk_bf16_f32 v{OB + 4 * h + i}, v{a + 8 * h + 2 * i}, v{a + 8 * h + 2 * i + 1}")
                o.append((f"buffer_store_dwordx4 {vr(OB + 4 * h)}, v{vOA}, {WS}, {sOUT} offen offset:{256 + 1024 * h}{sc}", "out"))
            s_, q_, t_ = TP, TP + 1, TP + 2
            o += [f"v_add_f32 v{s_}, v{a}, v{a + 1}", f"v_mul_f32 v{q_}, v{a}, v{a}", f"v_fmac_f32 v{q_}, v{a + 1}, v{a + 1}"]
            for i in range(2, 16):
                o += [f"v_add_f32 v{s_}, v{s_}, v{a + i}", f"v_fmac_f32 v{q_}, v{a + i}, v{a + i}"]
            o += [f"v_permlane16_swap_b32 v{s_}, v{q_}", f"v_add_f32 v{s_}, v{s_}, v{q_}", f"v_mov_b32 v{t_}, v{s_}",
                  f"v_permlane32_swap_b32 v{s_}, v{t_}", f"v_add_f32 v{s_}, v{s_}, v{t_}",
                  (f"buffer_store_dword v{s_}, v{vSO}, {WS}, {sOUT} offen{sc}", "out")]
            return o

        def body(key, mode, par, epi, pre):
            sc = " sc1" if mode == "slow" else ""
            s = self.seg(f"wo_{key}_{mode}")
            bb = []
            for k in range(16):
                for t in range(4):
                    d = vr(ACC + 16 * par + 4 * t)
                    bb.append(f"v_mfma_f32_16x16x32_bf16 {d}, {ar(16 * k + 4 * t)}, {vr(XR + 4 * (k % NX))}, {d}")
            fixed, xs, nxt, bg = self.xreads(par, 4, faddr, XR, NX, RA, pair=2)
            pl = []
            if pre:
                pl.append((0, self.poll_issue(sFB)))
                pl += [(17, x) for x in self.poll_check(sFB, "wo" + key, mode)]
                pl += [(17, x) for x in dma(1 - par)]
            main = []
            if epi:
                main += [(1, x, 2 if "permlane" in str(x) else 0) for x in epilogue(1 - par, sc)]
                main += [(1, x) for x in self.adv(sOUT, None, 32768, 16)]
            if pre:
                main += [(30, x) for x in self.touch(32768)]
                main += [(44, x) for x in cinit(1 - par)]
            if epi:
                main += [(62, x) for x in self.publish(sc)]
            dm = ["dma"] if pre else []
            self.stamp_at(fixed, bg)
            fixed.setdefault(bg, []).append(W(lgkm=["x15"], vm=dm, local=["x15"] + dm))
            if pre:
                fixed[bg].append("s_barrier")
                xs = xs + nxt
            s(weave(bb, fixed, [xs, pl, main], name=s.name))
            return s

        for mode, sc in (("fast", ""), ("slow", " sc1")):
            if mode == "slow":
                self.seg("wo_slow_lab")("L_wo_slow:")
            b0 = body("b0", mode, 0, False, True)
            self.seg("top")(".p2align 4", f"L_wo_{mode}_loop:")
            b1 = body("odd", mode, 1, True, True)
            b2 = body("even", mode, 0, True, True)
            b2(f"s_sub_u32 {sCNT}, {sCNT}, 1", f"s_cmp_eq_u32 {sCNT}, 8", f"s_cbranch_scc1 L_wo_{mode}_sw",
               f"s_cmp_lg_u32 {sCNT}, 0", f"s_cbranch_scc1 L_wo_{mode}_loop")
            self.cold(f"L_wo_{mode}_sw:", srd(XS, P_WS, 2097152, X2_BASE), f"s_lshl_b32 {sROW}, {sG}, 18",
                      f"s_add_u32 {sROW}, {sROW}, 16384", f"v_mov_b32 {vTA}, {OOB:#x}", f"s_branch L_wo_{mode}_loop")
            b3 = body("last", mode, 1, True, False)
            dr = self.seg(f"wo_{mode}_drain")
            dr(epilogue(1, sc), self.final_publish(sc), self.stamp(), "s_endpgm")
            self.finish([p, b0, b1, b2, b1, b2, b3, dr])

    def dn(self):
        vW, vRT, vXA, vMA, vPW, vPR, vRR, vSR, vOA, vSO, vEA = 16, 20, 24, 28, 29, 30, 31, 32, 33, 34, 35
        R2, RES, ACC, XR, RD, TP, XL = 36, 40, 48, 80, 136, 152, 168
        D, NS, RING, MISC, PB = 3, 4, 49152, 34816, 17408
        P = 26
        p = self.seg("dn_pro")
        p("L_dn:", f"s_sub_u32 {sC}, {sR}, 24")
        p(f"s_or_b32 {sT1}, {sC}, {sW}", f"s_cmp_eq_u32 {sT1}, 0", f"s_cselect_b32 {sT1}, 0, {OOB:#x}",
          f"v_add_u32 {vTMP}, {sT1}, {vL16}", f"v_mov_b32 {vTMP2}, 0x7fffffff", f"v_cmp_eq_u32 vcc, {F_ALARM // 16}, {vL}",
          f"v_mov_b32 v{TP + 1}, 0", f"v_mov_b32 v{TP + 2}, 0", f"v_mov_b32 v{TP + 3}, 0",
          f"v_cndmask_b32 v{TP}, {vF}, {vTMP2}, vcc",
          (f"buffer_store_dwordx4 {vr(TP)}, {vTMP}, {WS}, {sFB} offen sc1", "fz"),
          (f"buffer_store_dwordx4 {vr(TP)}, {vTMP}, {WS}, {sFB} offen offset:{F_SLOW} sc1", "fz"),
          srd(WSRD, P_D, 1792 * 1024), srd(XS, P_X, 2097152))
        p(f"v_lshrrev_b32 {vTMP}, 3, {vL}", f"v_lshlrev_b32 v{vW}, 10, {vTMP}", f"v_and_b32 {vTMP2}, 7, {vL}",
          f"v_lshl_add_u32 v{vXA}, {vTMP2}, 4, v{vW}", f"s_lshl_b32 {sT0}, {sC}, 7", f"v_add_u32 v{vXA}, {sT0}, v{vXA}",
          f"v_add_u32 v{vXA + 1}, 8192, v{vXA}",
          f"s_lshl_b32 {sROW}, {sG}, 4", f"s_add_u32 {sROW}, {sROW}, {sW}", f"s_add_u32 {sROW}, {sROW}, 127",
          f"s_lshl_b32 {sROW}, {sROW}, 14")
        for i in range(5):
            p(f"s_and_b32 {sT0}, {sROW}, 0x1fffff")
            for h in range(2):
                p((f"buffer_load_dwordx4 {vr(XL + 8 * i + 4 * h)}, v{vXA + h}, {XS}, {sT0} offen", f"x0_{i}"))
            p(f"s_add_u32 {sROW}, {sROW}, 65536")
        p(f"s_lshl_b32 {sT0}, {sG}, 4", f"s_add_u32 {sT0}, {sT0}, {sW}", f"s_add_u32 {sT0}, {sT0}, 127",
          f"v_lshl_add_u32 {vTA}, {vL}, 2, {sT0}", f"v_and_b32 {vTA}, 127, {vTA}",
          f"s_mul_i32 {sT0}, {sG}, {S0_GS:#x}", f"s_lshl_b32 {sT3}, {sC}, 7", f"s_add_u32 {sT0}, {sT0}, {sT3}",
          f"s_add_u32 {sT0}, {sT0}, {S0_BASE:#x}", f"v_lshl_add_u32 {vTA}, {vTA}, 10, {sT0}", self.keep_lanes(vTA, 5),
          self.touch(0)[:1],
          f"s_lshl_b32 {sT0}, {sG}, 2", f"s_add_u32 {sT0}, {sT0}, {sT1}", self.lane0_addr(vTMP, sT0),
          f"v_mov_b32 {vTMP2}, {sPAT}", W(vm=["fz"]), f"buffer_store_dword {vTMP2}, {vTMP}, {DBG}, 0 offen sc1")
        p(f"v_lshrrev_b32 {vTMP}, 3, {vL}", f"v_and_b32 {vTMP}, 2, {vTMP}", f"v_and_b32 {vTMP2}, 7, {vL}",
          f"v_xor_b32 {vTMP}, {vTMP}, {vTMP2}", f"v_lshl_add_u32 v{vW}, {vTMP}, 4, v{vW}",
          f"s_lshl_b32 {sT0}, {sC}, 7", f"v_add_u32 v{vW}, {sT0}, v{vW}",
          f"v_xor_b32 v{vW + 1}, 64, v{vW}", f"v_add_u32 v{vW + 3}, {3 * 7168}, v{vW + 1}",
          f"v_add_u32 v{vW + 1}, 7168, v{vW + 1}", f"v_add_u32 v{vW + 2}, {2 * 7168}, v{vW}",
          f"s_lshl_b32 {sM0}, {sW}, 14", f"s_add_u32 {sM0}, {sM0}, {RING}", f"s_mul_i32 {sWO}, {sW}, {14 * 32768}")
        p(f"v_lshrrev_b32 {vTMP}, 3, {vL}", f"v_and_b32 {vTMP2}, 7, {vL}", f"v_lshlrev_b32 v{vSO}, 2, {vTMP}",
          f"v_lshl_add_u32 v{vSO}, {vTMP2}, 6, v{vSO}", f"s_lshl_b32 {sT0}, {sC}, 7", f"v_add_u32 v{vSO}, {sT0}, v{vSO}",
          f"v_cmp_gt_u32 vcc, 2, {vTMP2}", f"v_mov_b32 {vTMP}, {OOB:#x}", f"v_cndmask_b32 v{vSO}, {vTMP}, v{vSO}, vcc",
          f"v_cmp_eq_u32 s[30:31], 1, {vTMP2}")
        dppm = "row_mask:0xf bank_mask:0xf"
        for i in range(5):
            p(W(vm=[f"x0_{i}"]))
            if i == 1:
                p(self.hs_issue())
            for h in range(2):
                x, s_, q_ = XL + 8 * i + 4 * h, TP + 2 * h, TP + 2 * h + 1
                for k in range(4):
                    p(f"v_dot2_f32_bf16 v{s_}, v{x + k}, v{ONES}, {'0' if k == 0 else f'v{s_}'}",
                      f"v_dot2_f32_bf16 v{q_}, v{x + k}, v{x + k}, {'0' if k == 0 else f'v{q_}'}")
            for pat in ("quad_perm:[1,0,3,2]", "quad_perm:[2,3,0,1]", "row_half_mirror"):
                for j in range(4):
                    p(f"v_add_f32_dpp v{TP + j}, v{TP + j}, v{TP + j} {pat} {dppm}")
            for h in range(2):
                p(f"v_cndmask_b32 v{XL + 8 * i + h}, v{TP + 2 * h}, v{TP + 2 * h + 1}, s[30:31]")
        p(self.hs_check())
        p(f"s_lshl_b32 {sT0}, {sC}, 2", f"s_add_u32 {sT0}, {sT0}, {sW}", f"s_lshl_b32 {sT0}, {sT0}, 2",
          f"s_add_u32 {sT0}, {sT0}, {F_DN}", self.lane0_addr(vFA, sT0), f"v_add_u32 v{vEA}, {F_SLOW + F_EXP - F_DN}, {vFA}",
          f"s_lshl_b32 {sROW}, {sG}, 4", f"s_add_u32 {sROW}, {sROW}, {sW}", f"s_add_u32 {sROW}, {sROW}, 127",
          f"s_lshl_b32 {sROW}, {sROW}, 10", f"s_mul_i32 {sT1}, {sG}, {S0_GS:#x}", f"s_add_u32 {sT1}, {sT1}, {S0_BASE:#x}",
          f"v_mov_b32 {vF}, 16", f"s_cmp_lg_u32 {sT2}, 0", "s_cbranch_scc1 L_dn_s0slow")

        def s0out(seg, sc):
            for i in range(5):
                seg(f"s_and_b32 {sT0}, {sROW}, 0x1ffff", f"s_add_u32 {sT0}, {sT0}, {sT1}")
                for h in range(2):
                    seg(f"buffer_store_dword v{XL + 8 * i + h}, v{vSO}, {WS}, {sT0} offen offset:{32 * h}{sc}")
                seg(f"s_add_u32 {sROW}, {sROW}, 4096")
            seg(self.final_publish(sc))
        s0out(p, "")
        p("L_dn_s0done:")
        self.cold("L_dn_s0slow:")
        s0out(self.cold, " sc1")
        self.cold("s_branch L_dn_s0done")
        p(self.stamp(), self.probe_mark("dn_s0"))

        def wstage(s):
            o = [f"s_add_u32 m0, {sM0}, {(s % NS) * 4096}", "s_nop 0"]
            o += [(f"buffer_load_dwordx4 v{vW + q}, {WSRD}, {sWO} offen offset:{q * 1024}{self.wnt} lds", f"w{s}") for q in range(4)]
            o += [f"s_add_u32 {sWO}, {sWO}, 32768"]
            return o
        for s in range(D):
            p(wstage(s))
        p(f"v_lshrrev_b32 {vTMP}, 2, {vT}", f"v_lshl_add_u32 v{vRT}, {vG}, 3, {vTMP}", f"v_lshlrev_b32 v{vRT}, 7, v{vRT}",
          f"v_lshrrev_b32 {vTMP}, 1, {vTMP}", f"v_and_b32 {vTMP2}, 1, {vG}", f"v_lshl_add_u32 {vTMP}, {vTMP2}, 1, {vTMP}",
          f"v_lshl_add_u32 v{vRT}, {vTMP}, 5, v{vRT}", f"v_and_b32 {vTMP}, 3, {vL}",
          f"v_lshl_add_u32 v{vRT}, {vTMP}, 3, v{vRT}", f"v_add_u32 v{vRT}, {sM0}, v{vRT}")
        for t in range(1, 4):
            p(f"v_xor_b32 v{vRT + t}, {32 * t}, v{vRT}")
        p(f"s_mul_i32 {sT0}, {sW}, {14 * 1024}", f"v_add_u32 v{vXA}, {sT0}, {vL16}")
        for q in range(1, 4):
            p(f"v_add_u32 v{vXA + q}, {4096 * q}, v{vXA}")
        p(f"s_lshr_b32 {sT0}, {sC}, 1", f"s_mul_i32 {sT0}, {sT0}, {REG}", f"s_and_b32 {sT1}, {sC}, 1", f"s_lshl_b32 {sT1}, {sT1}, 11",
          f"s_add_u32 {sT0}, {sT0}, {sT1}", f"s_lshl_b32 {sT1}, {sW}, 9", f"s_add_u32 {sT0}, {sT0}, {sT1}", f"s_add_u32 {sT0}, {sT0}, 256",
          f"v_add_u32 v{vMA}, {sT0}, {vL16}", f"s_mul_i32 {sT0}, {sW}, {REG}", f"v_lshl_add_u32 {vTMP}, {vT}, 4, {sT0}",
          f"v_cmp_gt_u32 vcc, 32, {vL}", f"v_cndmask_b32 v{vMA}, {vTMP}, v{vMA}, vcc",
          f"v_mov_b32 {vTMP}, {OOB:#x}", f"v_cmp_gt_u32 vcc, 48, {vL}", f"v_cndmask_b32 v{vMA}, {vTMP}, v{vMA}, vcc",
          f"s_lshl_b32 {sM1}, {sW}, 10", f"s_add_u32 {sM1}, {sM1}, {MISC}")
        p(f"s_mul_i32 {sT0}, {sW}, {REG}", f"v_mul_u32_u24 v{vPW}, 272, {vT}", f"v_lshl_add_u32 v{vPW}, {vG}, 4, v{vPW}",
          f"v_add_u32 v{vPW}, {sT0}, v{vPW}",
          f"s_lshl_b32 {sT0}, {sW}, 2", f"v_add_u32 {vTMP3}, {sT0}, {vG}",
          f"v_mul_u32_u24 v{vPR}, 272, {vTMP3}", f"v_lshl_add_u32 v{vPR}, {vT}, 4, v{vPR}",
          f"v_lshrrev_b32 {vTMP}, 2, {vT}", f"v_lshlrev_b32 v{vRR}, 10, {vTMP}", f"v_add_u32 v{vRR}, {MISC}, v{vRR}",
          f"v_and_b32 {vTMP}, 3, {vT}", f"v_lshl_add_u32 v{vSR}, {vTMP}, 6, v{vRR}", f"v_lshl_add_u32 v{vSR}, {vTMP3}, 2, v{vSR}",
          f"v_and_b32 {vTMP}, 2, {vT}", f"v_lshl_add_u32 v{vRR}, {vTMP}, 7, v{vRR}", f"v_lshl_add_u32 v{vRR}, {vTMP3}, 4, v{vRR}",
          f"v_and_b32 {vTMP}, 1, {vT}", f"v_lshl_add_u32 v{vRR}, {vTMP}, 3, v{vRR}",
          f"v_lshlrev_b32 v{vOA}, 10, {vTMP3}", f"v_lshl_add_u32 v{vOA}, {vT}, 3, v{vOA}", f"s_lshl_b32 {sT0}, {sC}, 7",
          f"v_add_u32 v{vOA}, {sT0}, v{vOA}",
          f"v_lshlrev_b32 v{vSO}, 2, {vTMP3}", f"v_lshl_add_u32 v{vSO}, {vT}, 6, v{vSO}", f"v_add_u32 v{vSO}, {sT0}, v{vSO}",
          f"v_mov_b32 {vTMP}, {OOB:#x}", f"v_cmp_gt_u32 vcc, 2, {vT}", f"v_cndmask_b32 v{vSO}, {vTMP}, v{vSO}, vcc",
          f"v_and_b32 {vTMP}, 1, {vT}", f"v_cmp_eq_u32 s[30:31], 1, {vTMP}",
          f"v_min_u32 {vPA}, 13, {vL}", f"s_mul_i32 {sT0}, {sW}, 56", f"s_add_u32 {sT0}, {sT0}, {F_GU}",
          f"v_lshl_add_u32 {vPA}, {vPA}, 2, {sT0}",
          f"s_mul_i32 {sIN}, {sG}, {H_GS:#x}", f"s_add_u32 {sIN}, {sIN}, {H_BASE:#x}",
          f"s_mul_i32 {sINB}, {sG}, {X1_GS:#x}", f"s_add_u32 {sINB}, {sINB}, {X1_BASE:#x}", f"s_mov_b32 {sNEED}, 1",
          f"s_lshl_b32 {sROW}, {sG}, 18", f"s_lshl_b32 {sST}, {sG}, 14", f"s_add_u32 {sST}, {sST}, {S2_BASE:#x}",
          srd(XS, P_WS, 2097152, X2_BASE))
        for s in range(14):
            p(W(vm=[f"w{s}"]))
            if s + D < 14:
                p(wstage(s + D))
            for t in range(4):
                for h in range(2):
                    p(f"ds_read_b64_tr_b16 {ar(16 * s + 4 * t + 2 * h, 2)}, v{vRT + t} offset:{(s % NS) * 4096 + h * 512}")
            p("s_waitcnt lgkmcnt(0)")
        p(self.stamp())

        def xload(s):
            return (f"buffer_load_dwordx4 {vr(XR + 4 * s)}, v{vXA + s // 4}, {WS}, {sIN} offen offset:{(s % 4) * 1024} sc1", f"x{s}")

        def misc(par):
            return [f"s_add_u32 m0, {sM1}, {par * 4096}", f"s_add_u32 {sNEED}, {sNEED}, 1",
                    (f"buffer_load_dwordx4 v{vMA}, {WS}, {sINB} offen sc1 lds", "misc")] + self.adv(sINB, None, 32768, 16)
        NE = (56 - P + 3) // 4
        p(self.poll_issue(sFB), self.poll_check(sFB, "dn", "pro"), misc(0), [xload(s) for s in range(NE)], self.stamp(),
          f"s_mov_b32 {sCNT}, 7", f"s_cmp_lg_u32 {sT2}, 0", "s_cbranch_scc1 L_dn_slow")

        def epi_a(par):
            a = ACC + 16 * par
            return [(f"ds_write_b128 v{vPW}, {vr(a + 4 * t)} offset:{par * PB + 64 * t}", "pw") for t in range(4)]

        def epi_b(par, sc, stats, export):
            o = [(f"ds_read_b128 {vr(RD + 4 * w)}, v{vPR} offset:{par * PB + REG * w}", f"pr{w}") for w in range(4)]
            o.append(W(lgkm=["pr1"]))
            o += [f"v_add_f32 v{RD + i}, v{RD + i}, v{RD + 4 + i}" for i in range(4)]
            o.append(W(lgkm=["pr3"]))
            o += [f"v_add_f32 v{RD + 8 + i}, v{RD + 8 + i}, v{RD + 12 + i}" for i in range(4)]
            o += [f"v_add_f32 v{RD + i}, v{RD + i}, v{RD + 8 + i}" for i in range(4)]
            o += [f"v_fma_f32 v{RD + i}, v{RD + i}, v{R2 + par}, v{RES + 4 * par + i}" for i in range(4)]
            o += [f"v_cvt_pk_bf16_f32 v{RD + 4 + i}, v{RD + 2 * i}, v{RD + 2 * i + 1}" for i in range(2)]
            dsc = " sc1" if export else sc
            o.append((f"buffer_store_dwordx2 {vr(RD + 4, 2)}, v{vOA}, {XS}, {sROW} offen{dsc}", "out"))
            o += [f"s_add_u32 {sROW}, {sROW}, 16384"]
            if not stats:
                o += [f"s_and_b32 {sROW}, {sROW}, 0x1fffff"]
                return o
            s_, q_ = RD + 8, RD + 9
            o += [f"v_add_f32 v{s_}, v{RD}, v{RD + 1}", f"v_mul_f32 v{q_}, v{RD}, v{RD}", f"v_fmac_f32 v{q_}, v{RD + 1}, v{RD + 1}"]
            for i in (2, 3):
                o += [f"v_add_f32 v{s_}, v{s_}, v{RD + i}", f"v_fmac_f32 v{q_}, v{RD + i}, v{RD + i}"]
            o += [f"v_add_f32_dpp v{s_}, v{s_}, v{s_} quad_perm:[1,0,3,2] {dppm}",
                  f"v_add_f32_dpp v{q_}, v{q_}, v{q_} quad_perm:[1,0,3,2] {dppm}",
                  f"v_cndmask_b32 v{s_}, v{s_}, v{q_}, s[30:31]"]
            o += [f"v_add_f32_dpp v{s_}, v{s_}, v{s_} row_ror:{n} {dppm}" for n in (2, 4, 8)]
            o += [(f"buffer_store_dword v{s_}, v{vSO}, {WS}, {sST} offen{dsc}", "out"), f"s_add_u32 {sST}, {sST}, 1024"]
            return o

        def prep(par):
            a, b, c = TP, TP + 1, TP + 2
            r = RES + 4 * par
            o = [(f"ds_read_b32 v{a}, v{vSR} offset:{par * 4096 + 512}", "ms"),
                 (f"ds_read_b64 v[{TP + 4}:{TP + 5}], v{vRR} offset:{par * 4096}", "mr"), W(lgkm=["mr"])]
            o += [f"v_add_f32_dpp v{a}, v{a}, v{a} row_ror:2 {dppm}",
                  f"v_lshlrev_b32 v{r}, 16, v{TP + 4}", f"v_and_b32 v{r + 1}, 0xffff0000, v{TP + 4}",
                  f"v_add_f32_dpp v{a}, v{a}, v{a} row_ror:4 {dppm}",
                  f"v_lshlrev_b32 v{r + 2}, 16, v{TP + 5}", f"v_and_b32 v{r + 3}, 0xffff0000, v{TP + 5}",
                  f"v_add_f32_dpp v{a}, v{a}, v{a} row_ror:8 {dppm}",
                  f"v_mul_f32 v{a}, {f32(1 / 512)}, v{a}",
                  f"v_mov_b32_dpp v{b}, v{a} quad_perm:[0,0,2,2] {dppm}", f"v_mov_b32_dpp v{c}, v{a} quad_perm:[1,1,3,3] {dppm}",
                  f"v_fma_f32 v{c}, -v{b}, v{b}, v{c}", f"v_max_f32 v{c}, 0, v{c}", f"v_add_f32 v{c}, {f32(1e-5)}, v{c}",
                  f"v_rcp_f32 v{R2 + par}, v{c}"]
            return o

        def body(key, mode, par, epi, pre, stats=True, export=False, pend=False, pexp=False):
            sc = " sc1" if mode == "slow" else ""
            s = self.seg(f"dn_{key}_{mode}")
            bb = []
            for k in range(14):
                for t in range(4):
                    d = vr(ACC + 16 * par + 4 * t)
                    bb.append(f"v_mfma_f32_16x16x32_bf16 {d}, {ar(16 * k + 4 * t)}, {vr(XR + 4 * k)}, {'0' if k == 0 else d}")
            fixed = {4 * k: [W(vm=[f"x{k}"], prior=[f"x{k}"]) if k < NE else W(vm=[f"x{k}"], local=[f"x{k}"])]
                     for k in range(14)}
            ld = []
            if pre:
                ld.append((0, self.poll_issue(sFB)))
            ld += [(P + 4 * k - 56, xload(k)) for k in range(NE, 14)]
            if pre:
                ld += [(P - 3, x) for x in self.poll_check(sFB, ("dnp2" if mode == "p2" else "dn") + key,
                                                           "slow" if mode == "p2" else mode)]
                ld += [(P - 3, x) for x in self.adv(sIN, None, 65536, 16)]
                ld += [(P - 3, x) for x in misc(1 - par)]
                ld += [(max(P + 4 * k, 4 * k + 3), xload(k)) for k in range(NE)]
            main = []
            if epi:
                main += [(1, x) for x in epi_a(1 - par)]
            if pend:
                main += [(5, x) for x in self.publish(sc, local=False)]
                if pexp:
                    main += [(5, f"v_mov_b32 {vTMP}, 64"), (5, f"buffer_store_dword {vTMP}, v{vEA}, {WS}, {sFB0} offen sc1")]
            BG = 9
            self.stamp_at(fixed, BG)
            fixed.setdefault(BG, []).extend([W(lgkm=["pw", "mr"], vm=["misc"], prior=["misc", "mr"],
                                               local=["pw"] if epi else []), "s_barrier"])
            if epi:
                eb = epi_b(1 - par, "" if mode == "p2" else sc, stats, export)
                main += [(BG, x, 4 if i == 4 else (1 if "_dpp" in str(x) else 0)) for i, x in enumerate(eb)]
            pr = prep(par)
            st2 = [(BG + 2, x, 4 if i == 2 else (1 if i == 11 else 0)) for i, x in enumerate(pr)]
            s(weave(bb, fixed, [ld, main, st2], cap=[2, 3], name=s.name))
            return s

        tails = []
        for mode in ("fast", "slow"):
            if mode == "slow":
                self.seg("dn_slow_lab")("L_dn_slow:")
            b0 = body("b0", mode, 0, False, True)
            b1 = body("b1", mode, 1, True, True, export=True)
            b2 = body("b2", mode, 0, True, True, pend=True, pexp=True)
            self.seg("top")(".p2align 4", f"L_dn_{mode}_loop:")
            b3 = body("odd", mode, 1, True, True, pend=True)
            b4 = body("even", mode, 0, True, True, pend=True)
            b4(f"s_sub_u32 {sCNT}, {sCNT}, 1", f"s_cmp_lg_u32 {sCNT}, 0", f"s_cbranch_scc1 L_dn_{mode}_loop")
            sw = self.seg("dn_sw")
            sw(srd(XS, P_OUT, 2097152), f"s_lshl_b32 {sROW}, {sG}, 18", f"s_add_u32 {sROW}, {sROW}, 16384",
               f"s_mov_b32 {sCNT}, 6")
            b17 = body("b17", mode, 1, True, True, stats=False, pend=True)
            if mode == "fast":
                self.seg("top")(".p2align 4", "L_dn_loop2:")
                c1 = body("even", "p2", 0, True, True, stats=False)
                c2 = body("odd", "p2", 1, True, True, stats=False)
                c2(f"s_sub_u32 {sCNT}, {sCNT}, 1", f"s_cmp_lg_u32 {sCNT}, 0", "s_cbranch_scc1 L_dn_loop2")
                c3 = body("b30", "p2", 0, True, True, stats=False)
                c4 = body("last", "p2", 1, True, False, stats=False)
                dr = self.seg("dn_drain")
                dr(epi_a(1), "s_waitcnt lgkmcnt(0)", "s_barrier", epi_b(1, "", False, False), "s_waitcnt vmcnt(0)",
                   self.stamp(), self.probe_mark("dn_end"), self.probe_end("dn"), "s_endpgm")
                tails = [c1, c2, c1, c2, c3, c4, dr]
            else:
                b17("s_branch L_dn_loop2")
            self.finish([p, b0, b1, b2, b3, b4, b3, b4, sw, b17] + tails)

    def qkv(self):
        vW, vRT, vXD, vXA, vD4, vSA, vOA, vOAK, vMW, vMR = 16, 17, 18, 22, 26, 27, 29, 30, 31, 32
        CSQ, CSK, CSV, BP, BO, BN = 36, 40, 44, 48, 52, 56
        ACC, XR = 64, 96
        SV, MR, QB, KB, VB, PB_, SP, SO_, OO, LL, TP = 128, 136, 152, 156, 160, 164, 168, 172, 176, 180, 184
        NX, RA, D, NS, RING, SCR, PRO = 8, 4, 3, 4, 40960, 36864, 90112
        PXA, PSA, MK, K512 = 208, 212, 216, 220
        CSC = 0.25 * math.log2(math.e)
        p = self.seg("qkv_pro")
        p("L_qkv:", srd(WSRD, P_QKV, 512 * 3072), srd(XS, P_X, 2097152))
        p(f"v_lshrrev_b32 {vTMP}, 3, {vL}", f"s_lshl_b32 {sT0}, {sW}, 3", f"v_add_u32 {vTMP2}, {sT0}, {vTMP}",
          f"v_mul_u32_u24 v{vW}, 3072, {vTMP2}", f"v_and_b32 {vTMP}, 2, {vTMP}", f"s_and_b32 {sT0}, {sW}, 1",
          f"s_lshl_b32 {sT0}, {sT0}, 2", f"v_or_b32 {vTMP}, {sT0}, {vTMP}", f"v_and_b32 {vTMP2}, 7, {vL}",
          f"v_xor_b32 {vTMP}, {vTMP}, {vTMP2}", f"v_lshl_add_u32 v{vW}, {vTMP}, 4, v{vW}", f"s_lshl_b32 {sT0}, {sR}, 7",
          f"v_add_u32 v{vW}, {sT0}, v{vW}",
          f"s_mul_i32 {sM0}, {sW}, 3072", f"s_add_u32 {sM0}, {sM0}, {RING}", f"s_mov_b32 {sWO}, 0")
        for q in range(4):
            p(f"v_add_u32 {vTMP}, {4 * q}, {vG}", f"v_xor_b32 {vTMP2}, {vTMP}, {vT}", f"v_lshlrev_b32 v{vXD + q}, 10, {vG}",
              f"v_lshl_add_u32 v{vXD + q}, {vTMP2}, 4, v{vXD + q}", f"s_lshl_b32 {sT0}, {sW}, 8",
              f"s_add_u32 {sT0}, {sT0}, {3072 * q}", f"v_add_u32 v{vXD + q}, {sT0}, v{vXD + q}")
        p(f"s_lshl_b32 {sM1}, {sW}, 12", f"s_lshl_b32 {sROW}, {sG}, 18", f"s_sub_u32 {sROW}, {sROW}, 16384",
          f"s_and_b32 {sROW}, {sROW}, 0x1fffff")

        def wstage(s):
            o = [f"s_add_u32 m0, {sM0}, {(s % NS) * 12288}", "s_nop 0"]
            o += [(f"buffer_load_dwordx4 v{vW}, {WSRD}, {sWO} offen offset:{q * 1024}{self.wnt} lds", f"w{s}") for q in range(3)]
            o += [f"s_add_u32 {sWO}, {sWO}, {32 * 3072}"]
            return o

        def xdma(par, base=0):
            o = [f"s_add_u32 m0, {sM1}, {base + par * XBUF}", f"s_lshr_b32 {sST}, {sROW}, 4"]
            o += [(f"buffer_load_dwordx4 v{vXD + q}, {XS}, {sROW} offen offset:{1024 * q} sc1 lds", "dma") for q in range(4)]
            return o

        def sdma(par):
            return [f"s_add_u32 m0, {sEVT}, {par * XBUF}", f"s_add_u32 {sROW}, {sROW}, 16384",
                    (f"buffer_load_dword v{vD4}, {SS}, {sST} offen sc1 lds", "dma"), f"s_and_b32 {sROW}, {sROW}, 0x1fffff"]
        nextrow = [f"s_add_u32 {sROW}, {sROW}, 16384", f"s_and_b32 {sROW}, {sROW}, 0x1fffff"]
        p(wstage(0), xdma(0, PRO), f"s_mov_b32 {sINB}, {sST}", nextrow, xdma(1, PRO), f"s_mov_b32 {sOUTB}, {sST}", nextrow,
          wstage(1), wstage(2))
        p(f"v_lshrrev_b32 {vTMP}, 2, {vT}", f"v_mul_u32_u24 v{vRT}, 3072, {vG}", f"v_lshl_add_u32 v{vRT}, {vTMP}, 7, v{vRT}",
          f"v_lshrrev_b32 {vTMP}, 1, {vTMP}", f"v_and_b32 {vTMP2}, 1, {vG}", f"v_lshl_add_u32 {vTMP}, {vTMP2}, 1, {vTMP}",
          f"v_xor_b32 {vTMP}, {sW}, {vTMP}", f"v_lshl_add_u32 v{vRT}, {vTMP}, 5, v{vRT}", f"v_and_b32 {vTMP}, 3, {vL}",
          f"v_lshl_add_u32 v{vRT}, {vTMP}, 3, v{vRT}", f"v_add_u32 v{vRT}, {RING}, v{vRT}")
        for q in range(4):
            p(f"v_add_u32 {vTMP}, {4 * q}, {vG}", f"v_xor_b32 {vTMP}, {vTMP}, {vT}", f"v_lshlrev_b32 v{vXA + q}, 8, {vT}",
              f"v_lshl_add_u32 v{vXA + q}, {vTMP}, 4, v{vXA + q}", f"v_add_u32 v{PXA + q}, {PRO}, v{vXA + q}")
        p(f"s_lshl_b32 {sT0}, {sW}, 8", f"v_lshl_add_u32 v{vD4}, {vL}, 2, {sT0}", f"s_add_u32 {sEVT}, {sT0}, 16384",
          f"v_lshlrev_b32 v{vSA}, 8, {vG}", f"v_lshl_add_u32 v{vSA}, {vT}, 2, v{vSA}", f"v_add_u32 v{vSA}, 16384, v{vSA}",
          f"v_add_u32 v{vSA + 1}, {XBUF}, v{vSA}", f"v_add_u32 v{PSA}, {PRO}, v{vSA}", f"v_add_u32 v{PSA + 1}, {PRO}, v{vSA + 1}",
          f"v_mov_b32 v{K512}, {f32(1 / 512)}",
          f"s_lshl_b32 {sC}, {sR}, 2", f"s_add_u32 {sC}, {sC}, {sW}", f"s_lshl_b32 {sT0}, {sC}, 9",
          f"v_lshrrev_b32 {vTMP}, 1, {vG}", f"v_lshlrev_b32 v{vOAK}, 8, {vTMP}", f"v_lshl_add_u32 v{vOAK}, {vT}, 4, v{vOAK}",
          f"v_and_b32 {vTMP}, 1, {vG}", f"v_lshl_add_u32 v{vOAK}, {vTMP}, 3, v{vOAK}", f"v_add_u32 v{vOAK}, {sT0}, v{vOAK}",
          f"v_mov_b32 v{vOA}, v{vOAK}",
          f"s_lshl_b32 {sT0}, {sW}, 7", f"s_add_u32 {sT0}, {sT0}, {SCR}", f"v_lshl_add_u32 v{vMW}, {vT}, 3, {sT0}",
          f"v_lshl_add_u32 v{vMR}, {vG}, 5, {sT0}",
          f"v_and_b32 {vPA}, 31, {vL}", f"v_lshlrev_b32 {vPA}, 2, {vPA}", f"v_add_u32 {vPA}, {F_DN}, {vPA}",
          f"s_lshl_b32 {sT0}, {sC}, 2", self.lane0_addr(vFA, sT0),
          f"s_mul_i32 {sOUT}, {sG}, {O_GS:#x}", f"s_add_u32 {sOUT}, {sOUT}, {O_BASE:#x}", f"s_mov_b32 {sNEED}, 3",
          f"s_lshl_b32 {sT0}, {sC}, 9", f"s_add_u32 {sT0}, {sT0}, {sOUT}", f"v_lshl_add_u32 {vTA}, {vL}, 7, {sT0}",
          self.keep_lanes(vTA, 4),
          f"s_mul_i32 {sT0}, {sG}, {S0_GS:#x}", f"s_add_u32 {sT0}, {sT0}, {S0_BASE:#x}",
          f"s_add_u32 s16, s{P_WS}, {sT0}", f"s_addc_u32 s17, s{P_WS + 1}, 0", "s_mov_b32 s18, 0x20000", "s_mov_b32 s19, 0x20000")
        p(f"v_mov_b32 {vTMP3}, {f32(-1e30)}")
        for r in range(4):
            p(f"v_lshl_add_u32 {vTMP}, {vG}, 2, {r}", f"v_sub_u32 {vTMP2}, {vT}, {vTMP}",
              f"v_and_b32 v{TP}, 0x80000001, {vTMP2}", f"v_cmp_eq_u32 vcc, 0, v{TP}",
              f"v_cndmask_b32 v{BO + r}, {vTMP3}, {vF}, vcc",
              f"v_sub_u32 {vTMP2}, {vTMP}, {vT}", f"v_subrev_u32 {vTMP2}, 2, {vTMP2}",
              f"v_and_b32 v{TP}, 0x80000001, {vTMP2}", f"v_cmp_eq_u32 vcc, 0, v{TP}",
              f"v_cndmask_b32 v{BN + r}, {vTMP3}, {vF}, vcc")
        for i, b in enumerate((BN, BN + 2, BO, BO + 2)):
            p(f"v_mov_b32 {vTMP}, 0xffff", f"v_cmp_eq_u32 vcc, 0, v{b}", f"v_cndmask_b32 v{MK + i}, {vF}, {vTMP}, vcc",
              f"v_mov_b32 {vTMP}, 0xffff0000", f"v_cmp_eq_u32 vcc, 0, v{b + 1}", f"v_cndmask_b32 v{MK + i}, v{MK + i}, {vTMP}, vcc")

        def setmask(gval):
            o = [f"s_cmp_eq_u32 {sG}, {gval}", "s_cselect_b64 vcc, -1, 0", f"v_mov_b32 {vTMP3}, {f32(-1e30)}", "s_nop 1"]
            return o + [f"v_cndmask_b32 v{BP + r}, v{BN + r}, {vTMP3}, vcc" for r in range(4)]
        p(setmask(0))

        faddr = lambda par, s: (f"v{vXA + s % 4}", par * XBUF + (s // 4) * 4096)

        def mm(par, k, x):
            a = ACC + 16 * par
            c = lambda d: "0" if k == 0 else d
            w = lambda t: ar(12 * k + 4 * t)
            return [f"v_mfma_f32_16x16x32_bf16 {vr(a)}, {w(0)}, {x}, {c(vr(a))}",
                    f"v_mfma_f32_16x16x32_bf16 {vr(a + 4)}, {w(1)}, {x}, {c(vr(a + 4))}",
                    f"v_mfma_f32_16x16x32_bf16 {vr(a + 8)}, {x}, {w(2)}, {c(vr(a + 8))}"]
        for s in range(16):
            p(W(vm=[f"w{s}"] + (["dma"] if s == 0 else [])), "s_barrier")
            if s + D < 16:
                p(wstage(s + D))
            if s == 5:
                p(self.hs_issue())
            if s == 8:
                p(self.hs_check(), self.touch(16384), self.touch(16384), xdma(0))
            if s == 10:
                p(self.poll_issue(sPF))
            if s == 13:
                p(self.poll_check(sPF, "qkv", "pro"))
                for par, so in ((0, sINB), (1, sOUTB)):
                    p(f"s_add_u32 m0, {sEVT}, {PRO + par * XBUF}", "s_nop 0",
                      (f"buffer_load_dword v{vD4}, {SS}, {so} offen sc1 lds", "dma"))
                p(sdma(0), f"s_add_u32 {sNEED}, {sNEED}, 1")
            for t in range(3):
                for h in range(2):
                    p(f"ds_read_b64_tr_b16 {ar(12 * s + 4 * t + 2 * h, 2)}, v{vRT} offset:{(s % NS) * 12288 + t * 1024 + h * 512}")
            for par in range(2):
                p(f"ds_read_b128 {vr(XR + 4 * par)}, v{PXA + s % 4} offset:{faddr(par, s)[1]}")
            p("s_waitcnt lgkmcnt(0)")
            c = lambda d: "0" if s == 0 else d
            p(mm(0, s, vr(XR)), mm(1, s, vr(XR + 4)),
              f"v_mfma_f32_16x16x32_bf16 {vr(CSQ)}, {ar(12 * s)}, {vr(ONES)}, {c(vr(CSQ))}",
              f"v_mfma_f32_16x16x32_bf16 {vr(CSK)}, {ar(12 * s + 4)}, {vr(ONES)}, {c(vr(CSK))}",
              f"v_mfma_f32_16x16x32_bf16 {vr(CSV)}, {vr(ONES)}, {ar(12 * s + 8)}, {c(vr(CSV))}")
        p(self.stamp())

        def stats(par, vSA=vSA):
            a, b, c, d = TP + 16, TP + 17, TP + 18, TP + 19
            S, R, C = SV + 4 * par, SV + 4 * par + 1, SV + 4 * par + 2
            m = MR + 8 * par
            return [(f"ds_read2_b32 v[{a}:{b}], v{vSA + par} offset0:0 offset1:32", "st0"),
                    (f"ds_read2_b32 v[{c}:{d}], v{vSA + par} offset0:16 offset1:48", "st"), W(lgkm=["st"]),
                    f"v_add_f32 v{a}, v{a}, v{b}", f"v_add_f32 v{c}, v{c}, v{d}", f"v_permlane16_swap_b32 v{a}, v{c}",
                    f"v_add_f32 v{a}, v{a}, v{c}", f"v_mov_b32 v{b}, v{a}", f"v_permlane32_swap_b32 v{a}, v{b}",
                    f"v_add_f32 v{S}, v{a}, v{b}", f"v_add_f32 v{b}, v{a}, v{b}", f"v_permlane16_swap_b32 v{S}, v{b}",
                    f"v_mul_f32 v{a}, v{K512}, v{S}", f"v_fmaak_f32 v{b}, v{K512}, v{b}, {f32(1e-5)}",
                    f"v_fma_f32 v{b}, -v{a}, v{a}, v{b}", f"v_max_f32 v{b}, {f32(1e-5)}, v{b}",
                    f"v_rsq_f32 v{R}, v{b}", f"v_mul_f32 v{C}, {f32(CSC)}, v{R}",
                    (f"ds_write_b64 v{vMW}, v[{S}:{R}]", "mw"),
                    (f"ds_read_b128 {vr(m)}, v{vMR}", "mr0"), (f"ds_read_b128 {vr(m + 4)}, v{vMR} offset:16", "mr")]

        def epi_k(par):
            a, S, R = ACC + 16 * par + 4, SV + 4 * par, SV + 4 * par + 1
            o = [f"v_fma_f32 v{TP + 4 + r}, v{S}, v{CSK + r}, v{a + r}" for r in range(4)]
            o += [f"v_mul_f32 v{TP + 4 + r}, v{TP + 4 + r}, v{R}" for r in range(4)]
            o += [f"v_cvt_pk_bf16_f32 v{KB + 2 * par + i}, v{TP + 4 + 2 * i}, v{TP + 5 + 2 * i}" for i in range(2)]
            return o

        def epi_v(par):
            a, m = ACC + 16 * par + 8, MR + 8 * par
            o = [f"v_fma_f32 v{TP + 8 + r}, v{m + 2 * r}, v{CSV}, v{a + r}" for r in range(4)]
            o += [f"v_mul_f32 v{TP + 8 + r}, v{TP + 8 + r}, v{m + 2 * r + 1}" for r in range(4)]
            o += [f"v_cvt_pk_bf16_f32 v{VB + 2 * par + i}, v{TP + 8 + 2 * i}, v{TP + 9 + 2 * i}" for i in range(2)]
            return o

        def epilogue(par, sc):
            a, S, C = ACC + 16 * par, SV + 4 * par, SV + 4 * par + 2
            mx, t2 = TP + 12, TP + 13
            o = [f"v_fma_f32 v{TP + r}, v{S}, v{CSQ + r}, v{a + r}" for r in range(4)]
            o += [f"v_cvt_pk_bf16_f32 v{QB + i}, v{TP + 2 * i}, v{TP + 2 * i + 1}" for i in range(2)]
            ek = epi_k(par)
            o += ek[:2]
            o += [f"v_mfma_f32_16x16x16_bf16 {vr(SP)}, {vr(KB + 2 * (1 - par), 2)}, {vr(QB, 2)}, {vr(BP)}"]
            o += ek[2:]
            ev = [W(lgkm=["mr"], prior=["mr"])] + epi_v(par)
            o += ev[:3]
            o += [f"v_mfma_f32_16x16x16_bf16 {vr(SO_)}, {vr(KB + 2 * par, 2)}, {vr(QB, 2)}, {vr(BO)}"]
            o += ev[3:]
            e0, e1 = TP, TP + 1
            o += [f"v_max_f32 v{e0}, v{SP}, v{SP + 1}", f"v_max_f32 v{e1}, v{SP + 2}, v{SP + 3}",
                  f"v_max3_f32 v{e0}, v{SO_}, v{SO_ + 1}, v{e0}", f"v_max3_f32 v{e1}, v{SO_ + 2}, v{SO_ + 3}, v{e1}",
                  f"v_max_f32 v{mx}, v{e0}, v{e1}", f"v_max_f32 v{t2}, v{e0}, v{e1}",
                  f"v_permlane16_swap_b32 v{mx}, v{t2}",
                  f"v_max_f32 v{TP + 14}, v{mx}, v{t2}", f"v_max_f32 v{mx}, v{mx}, v{t2}",
                  f"v_permlane32_swap_b32 v{mx}, v{TP + 14}", f"v_max_f32 v{mx}, v{mx}, v{TP + 14}",
                  f"v_sub_f32 v{e0}, v{e0}, v{mx}", f"v_sub_f32 v{e1}, v{e1}, v{mx}",
                  f"v_mul_f32 v{e0}, v{e0}, v{C}", f"v_mul_f32 v{e1}, v{e1}, v{C}",
                  f"v_exp_f32 v{e0}, v{e0}", f"v_exp_f32 v{e1}, v{e1}",
                  f"v_cvt_pk_bf16_f32 v{e0}, v{e0}, v{e0}", f"v_cvt_pk_bf16_f32 v{e1}, v{e1}, v{e1}"]
            o += [f"v_and_b32 v{PB_ + 2 * (1 - par) + i}, v{MK + i}, v{e0 + i}" for i in range(2)]
            o += [f"v_and_b32 v{PB_ + 2 * par + i}, v{MK + 2 + i}, v{e0 + i}" for i in range(2)]
            o += [
                  f"v_mfma_f32_16x16x32_bf16 {vr(LL)}, {vr(ONES)}, {vr(PB_)}, 0",
                  f"v_mfma_f32_16x16x32_bf16 {vr(OO)}, {vr(VB)}, {vr(PB_)}, 0",
                  f"v_rcp_f32 v{LL}, v{LL}"]
            o += [f"v_mul_f32 v{OO + r}, v{OO + r}, v{LL}" for r in range(4)]
            o += [f"v_cvt_pk_bf16_f32 v{OO + i}, v{OO + 2 * i}, v{OO + 2 * i + 1}" for i in range(2)]
            o += [(f"buffer_store_dwordx2 {vr(OO, 2)}, v{vOA}, {WS}, {sOUT} offen{sc}", "out")]
            return o + self.adv(sOUT, None, 16384, 16)

        for i in range(9):
            p(f"v_mul_f32 v{CSQ + i}, {f32(-1 / 512)}, v{CSQ + i}")
        p("s_waitcnt vmcnt(0)", "s_barrier", self.first_reads(faddr, XR, NX, RA, 0),
          stats(0, PSA), "s_waitcnt lgkmcnt(0)", stats(1, PSA), epi_k(0), epi_v(0), self.stamp(),
          f"v_mov_b32 {vF}, -1", f"s_mov_b32 {sCNT}, 5", f"s_cmp_lg_u32 {sT2}, 0", "s_cbranch_scc1 L_qkv_slow_loop")

        def gap_of(x):
            t = str(x.text if isinstance(x, I) else x)
            if "permlane" in t or "v_mfma" in t:
                return 1
            if "v_rcp" in t:
                return 2
            return 0

        def body(name, par, sc, mode):
            s = self.seg(name)
            bb = []
            for k in range(16):
                bb += mm(par, k, vr(XR + 4 * (k % NX)))
            fixed, xs, nxt, bg = self.xreads(par, 3, faddr, XR, NX, RA, pair=2)
            pl = [(0, self.poll_issue(sPF))] + [(7, x) for x in self.publish(sc, local=False)]
            pl += [(13, x) for x in self.poll_check(sPF, f"qkv{par}", mode)]
            pl += [(13, x) for x in xdma(1 - par) + sdma(1 - par) + [f"s_add_u32 {sNEED}, {sNEED}, 1"]]
            main = [(1, x, gap_of(x)) for x in epilogue(1 - par, sc) + self.touch(16384)]
            stt = stats(par)
            pl += [(20, stt[0]), (20, stt[1])]
            st2 = [(24, W(lgkm=["st"], local=["st"]))] + [(24, x, gap_of(x)) for x in stt[3:]]
            self.stamp_at(fixed, bg)
            fixed.setdefault(bg, []).append(W(lgkm=["x15", "st"], vm=["dma"], local=["x15", "st", "dma"]))
            fixed[bg].append("s_barrier")
            s(f"s_cmp_eq_u32 {sNEED}, {sCNT}", f"s_cbranch_scc1 L_qkv_{mode}_evt{par}", f"L_qkv_{mode}_back{par}:")
            s(weave(bb, fixed, [xs + nxt, pl, main, st2], cap=3, name=name))
            return s

        for mode, sc in (("fast", ""), ("slow", " sc1")):
            self.seg("top")(".p2align 4", f"L_qkv_{mode}_loop:")
            b0 = body(f"qkv_{mode}_even", 0, sc, mode)
            b1 = body(f"qkv_{mode}_odd", 1, sc, mode)
            b1(f"s_cmp_lg_u32 {sNEED}, 36", f"s_cbranch_scc1 L_qkv_{mode}_loop")
            dr = self.seg(f"qkv_{mode}_drain")
            dr(self.publish(sc, local=False), setmask(7), epilogue(1, sc), self.final_publish(sc), self.stamp(), "s_endpgm")
            c = self.cold
            c(f"L_qkv_{mode}_evt1:", f"s_cmp_eq_u32 {sCNT}, 5", f"s_cbranch_scc0 L_qkv_{mode}_e19",
              [f"v_mov_b32 v{BP + r}, v{BN + r}" for r in range(4)], f"s_mov_b32 {sCNT}, 18", "s_nop 1",
              f"s_branch L_qkv_{mode}_back1",
              f"L_qkv_{mode}_e19:", f"v_mov_b32 v{vOA}, v{vOAK}", f"v_subrev_u32 {vF}, 1, {vF}", f"s_mov_b32 {sCNT}, 34", f"s_branch L_qkv_{mode}_back1")
            c(f"L_qkv_{mode}_evt0:", f"s_cmp_eq_u32 {sCNT}, 18", f"s_cbranch_scc0 L_qkv_{mode}_e18",
              srd(XS, P_WS, 2097152, X2_BASE), srd(SS, P_WS, 0x20000, S2_BASE), f"s_lshl_b32 {sROW}, {sG}, 18",
              f"v_mov_b32 {vTA}, {OOB:#x}", f"s_mov_b32 {sCNT}, 20", f"s_branch L_qkv_{mode}_back0",
              f"L_qkv_{mode}_e18:", f"s_cmp_eq_u32 {sCNT}, 20", f"s_cbranch_scc0 L_qkv_{mode}_e32",
              f"v_mov_b32 v{vOA}, {OOB:#x}", f"s_sub_u32 {sOUT}, {sOUT}, 16384",
              f"s_mov_b32 {sCNT}, 21", f"s_branch L_qkv_{mode}_back0",
              f"L_qkv_{mode}_e32:", f"s_add_u32 {sPF}, {sG}, 1", f"s_and_b32 {sPF}, {sPF}, 7",
              f"L_qkv_{mode}_nb:", f"s_sub_u32 {sTO}, {sTO}, 1", "s_cbranch_scc1 L_exit", self.hs_issue(sPF),
              "s_waitcnt vmcnt(0)", f"v_cmp_eq_u32 vcc, 0, {vP}", f"s_cbranch_vccnz L_qkv_{mode}_nb",
              f"s_lshl_b32 {sPF}, {sPF}, 11", f"s_add_u32 {sPF}, {sPF}, {F_SLOW}",
              f"v_and_b32 {vPA}, 31, {vL}", f"v_lshlrev_b32 {vPA}, 2, {vPA}", f"v_add_u32 {vPA}, {F_EXP}, {vPA}",
              f"s_mov_b32 {sCNT}, 0", f"s_branch L_qkv_{mode}_back0")
            self.finish([p, b0, b1, b0, b1, dr])

    def build(self):
        self.entry()
        self.qkv()
        self.wo()
        self.gu()
        self.dn()
        self.cold("L_exit:", "s_endpgm")
        self.layout.append(self.cold)
        for sg in self.layout:
            check_order(sg)
        for t in self.traces:
            resolve_waits(t)
        for t in self.traces:
            fix_hazards(t)
        fix_hazards([self.cold])
        ref = open(f"cdna_kernels/{NAME}.s.ref").read().split("\n") if os.path.exists(
            f"cdna_kernels/{NAME}.s.ref") else []
        hdr = [l for l in ref if l.startswith(";") and "@launch" not in l and "Override" not in l and "grid=ceil" not in l]
        out = "\n".join(hdr) + ("\n" if hdr else "")
        out += "; @launch grid=(256,1,1) block=(256,1,1) lds=163840\n"
        out += f'.amdgcn_target "amdgcn-amd-amdhsa--gfx950"\n.text\n.globl {NAME}_kernel\n.p2align 8\n'
        out += f".type {NAME}_kernel,@function\n{NAME}_kernel:\n"
        out += emit(self.layout)
        out += f""".section .rodata,"a"
.p2align 6
.amdhsa_kernel {NAME}_kernel
  .amdhsa_next_free_vgpr 512
  .amdhsa_next_free_sgpr 96
  .amdhsa_accum_offset 256
  .amdhsa_group_segment_fixed_size 0
  .amdhsa_kernarg_size 80
  .amdhsa_user_sgpr_count 2
  .amdhsa_user_sgpr_kernarg_segment_ptr 1
  .amdhsa_system_sgpr_workgroup_id_x 1
.end_amdhsa_kernel
"""
        return out


if __name__ == "__main__":
    cfg = dict(CFG)
    outp = None
    for a in sys.argv[1:]:
        if "=" in a:
            k, v = a.split("=")
            cfg[k] = eval(v)
        else:
            outp = a
    g = Gen(cfg)
    txt = g.build()
    open(outp or f"cdna_kernels/{NAME}.s", "w").write(txt)
    if cfg.get("verbose"):
        print("\n".join(weave.log))
        print("\n".join(fix_hazards.log))
```
